```python
import torch

def _softmax(x, axis=-1):
    return torch.softmax(x, dim=axis)

def _gelu(x):
    return torch.nn.functional.gelu(x, approximate='tanh')

def _silu(x):
    return torch.nn.functional.silu(x)

def _sigmoid(x):
    return torch.sigmoid(x)

def _layernorm(x, axis=-1, eps=1e-05):
    m = x.mean(dim=axis, keepdim=True)
    v = x.var(dim=axis, keepdim=True, unbiased=False)
    return (x - m) / torch.sqrt(v + eps)

def _scatter_add(tgt, idx, src, axis=0):
    return tgt.clone().index_add_(axis, idx, src)

def _segment_sum(src, seg, n):
    out = torch.zeros((n,) + src.shape[1:], dtype=src.dtype)
    return out.index_add_(0, seg, src)

def _pad(x, pw):
    flat = tuple((v for pair in reversed(pw) for v in pair))
    return torch.nn.functional.pad(x, flat)
kernel_name = 'adaLN_cond__gqa_block_cached__moe_arch_mod__prompt'

def setup_inputs():

    _w = lambda a: (lambda t: t.to(torch.bfloat16) if t.is_floating_point() else t)(torch.as_tensor(a))

    def _A_setup():
        B, Sq, D = (1, 2048, 448)
        Hq, Hkv, Sk, Dh = (16, 8, 2048, 256)
        assert Hq % Hkv == 0, (Hq, Hkv)
        return {'x': _w((lambda *s: torch.randn(*s, dtype=torch.bfloat16) * 0.05)(B, Sq, D)), 'k_cache': _w((lambda *s: torch.randn(*s, dtype=torch.bfloat16) * 3.2)(B, Hkv, Sk, Dh)), 'v_cache': _w((lambda *s: torch.randn(*s, dtype=torch.bfloat16) * 0.4)(B, Hkv, Sk, Dh)), 'wq': _w((lambda *s: torch.randn(*s, dtype=torch.bfloat16) * 3.2)(D, Hq * Dh) * D ** (-0.5)), 'wo': _w((lambda *s: torch.randn(*s, dtype=torch.bfloat16) * 0.4)(Hq * Dh, D) * (Hq * Dh) ** (-0.5))}
    _A_in = _A_setup()

    def _B_setup():
        B, S, D, F, C = (1, 2048, 448, 1792, 1)
        return {'x': _w((lambda *s: torch.randn(*s, dtype=torch.bfloat16) * 0.05)(B, S, D)), 'w_r': _w((lambda *s: torch.randn(*s, dtype=torch.bfloat16) * 3.2)(D)), 'w_gate': _w((lambda *s: torch.randn(*s, dtype=torch.bfloat16) * 0.1)(D, F)), 'w_up': _w((lambda *s: torch.randn(*s, dtype=torch.bfloat16) * 0.1)(D, F)), 'w_down': _w((lambda *s: torch.randn(*s, dtype=torch.bfloat16) * 0.1)(F, D))}
    _B_in = _B_setup()
    return {'A_x': _A_in['x'], 'A_k_cache': _A_in['k_cache'], 'A_v_cache': _A_in['v_cache'], 'A_wq': _A_in['wq'], 'A_wo': _A_in['wo'], 'B_x': _B_in['x'], 'B_w_r': _B_in['w_r'], 'B_w_gate': _B_in['w_gate'], 'B_w_up': _B_in['w_up'], 'B_w_down': _B_in['w_down'], 'c': _w((lambda *s: torch.randn(*s, dtype=torch.bfloat16) * 0.1)(1, 448) * 8.0), 'w_mod': _w((lambda *s: torch.randn(*s, dtype=torch.bfloat16) * 0.1)(448, 6 * 448) * 448 ** (-0.5) * 8.0)}

def reference(A_x, A_k_cache, A_v_cache, A_wq, A_wo, B_x, B_w_r, B_w_gate, B_w_up, B_w_down, c, w_mod):

    def _A_ref(x, k_cache, v_cache, wq, wo):
        B, Sq, D = x.shape
        Hq, Dh = (16, 256)
        Hkv = k_cache.shape[1]
        rep = Hq // Hkv
        q = (lambda x, *d: x.permute(*d))((x @ wq).reshape(B, Sq, Hq, Dh), 0, 2, 1, 3)
        k = (lambda x, n, axis: torch.repeat_interleave(x, n, dim=axis))(k_cache, rep, axis=1)
        v = (lambda x, n, axis: torch.repeat_interleave(x, n, dim=axis))(v_cache, rep, axis=1)
        scores = torch.einsum('bhqd,bhkd->bhqk', q, k) * Dh ** (-0.5)
        p = _softmax(scores, axis=-1)
        o = torch.einsum('bhqk,bhkd->bhqd', p, v)
        return (lambda x, *d: x.permute(*d))(o, 0, 2, 1, 3).reshape(B, Sq, Hq * Dh) @ wo

    def _B_ref(x, w_r, w_gate, w_up, w_down):
        B, S, D = x.shape
        C = 1
        r = x @ w_r
        idx = torch.argsort(-r, axis=-1)[:, :C]
        idx_e = (lambda x, n, axis: torch.repeat_interleave(x, n, dim=axis))(idx.reshape(B, C, 1), D, axis=2)
        x_sel = (lambda x, i, axis: torch.take_along_dim(x, i, dim=axis))(x, idx_e, axis=1)
        g = _silu(x_sel @ w_gate)
        u = x_sel @ w_up
        y = g * u @ w_down
        r_sel = _sigmoid((lambda x, i, axis: torch.take_along_dim(x, i, dim=axis))(r, idx, axis=1))
        y = y * r_sel.reshape(B, C, 1)
        b_off = (torch.arange(B) * S).reshape(B, 1)
        flat_idx = (idx + b_off).reshape(B * C)
        zero = (x * 0.0).reshape(B * S, D)
        upd = _scatter_add(zero, flat_idx, y.reshape(B * C, D), axis=0)
        return x + upd.reshape(B, S, D)
    x = A_x
    mod = (_silu(c) @ w_mod).reshape(c.shape[0], 6, 1, -1)
    sa, ca, ga, sb, cb, gb = (mod[:, 0].clone(), mod[:, 1].clone(), mod[:, 2].clone(), mod[:, 3].clone(), mod[:, 4].clone(), mod[:, 5].clone())
    h = _layernorm(x, axis=-1) * (1 + ca) + sa
    x = x + ga * _A_ref(h, A_k_cache, A_v_cache, A_wq, A_wo)
    h = _layernorm(x, axis=-1) * (1 + cb) + sb
    x = x + gb * _B_ref(h, B_w_r, B_w_gate, B_w_up, B_w_down)
    return x
```

```python
from common import *
import math
CSC = math.log2(math.e)/16.0
THR = 60.0
KP, VP = 1056, 1152
KT, VT = 16*KP, 16*VP
K1B, K0B = 96256, 130048
QB=128; SB=[64,96]; FR=32
def Q(qb,s): return f"v[{QB+qb*64+s*4}:{QB+qb*64+s*4+3}]"
def O(db,qb): b=(db*2+qb)*16; return f"a[{b}:{b+15}]"
def FRAG(f): b=FR+(f%8)*4; return b
VK,VVE,VVO,VDK,VDV,MC,L,TM,AL = 1,2,3,4,5,6,8,10,18
def frag_reads(kind, f, slot):
    b=FRAG(f)
    if kind=='K':
        return [f"ds_read_b128 v[{b}:{b+3}], v{VK} offset:{(33792 if slot==0 else 0)+f*32}"]
    db,s=f>>1,f&1
    va = VVE if db%2==0 else VVO
    return [f"ds_read_b64_tr_b16 v[{b+2*t}:{b+2*t+1}], v{va} offset:{slot*VT+(8*s+4*t)*VP+db*64}" for t in range(2)]
def dma(kind, slot, p):
    if kind=='K': return [f"s_add_u32 m0, s{24+slot}, {p*KP-(p&3)*1024}", "s_nop 0", f"buffer_load_dwordx4 v{VDK}, s[8:11], s{20+(p>>2)} offen offset:{(p&3)*1024} lds"]
    return [f"s_add_u32 m0, s{26+slot}, {p*VP-(p&3)*1024}", "s_nop 0", f"buffer_load_dwordx4 v{VDV}, s[12:15], s{22+(p>>2)} offen offset:{(p&3)*1024} lds"]
def adv(kind):
    b=20 if kind=='K' else 22
    return [f"s_add_u32 s{b}, s{b}, 16384", f"s_add_u32 s{b+1}, s{b+1}, 16384"]
def softmax(sb, init, uid):
    o=[]
    for qb in range(2):
        S=SB[sb]+16*qb; t=TM+4*qb
        o+= [f"v_max3_f32 v{t}, v{S}, v{S+1}, v{S+2}", f"v_max3_f32 v{t+1}, v{S+3}, v{S+4}, v{S+5}", f"v_max3_f32 v{t+2}, v{S+6}, v{S+7}, v{S+8}",
             f"v_max3_f32 v{t+3}, v{S+9}, v{S+10}, v{S+11}", f"v_max3_f32 v{t}, v{t}, v{S+12}, v{S+13}", f"v_max3_f32 v{t+1}, v{t+1}, v{S+14}, v{S+15}",
             f"v_max3_f32 v{t}, v{t}, v{t+2}, v{t+3}", f"v_max_f32 v{t}, v{t}, v{t+1}", f"v_mov_b32 v{t+1}, v{t}"]
    o+= ["s_nop 0", f"v_permlane32_swap_b32 v{TM}, v{TM+1}", f"v_permlane32_swap_b32 v{TM+4}, v{TM+5}", "s_nop 0",
         f"v_max_f32 v{TM}, v{TM}, v{TM+1}", f"v_max_f32 v{TM+4}, v{TM+4}, v{TM+5}"]
    if init:
        o+= [f"v_mul_f32 v{MC}, s28, v{TM}", f"v_mul_f32 v{MC+1}, s28, v{TM+4}", f"v_mov_b32 v{L}, 0", f"v_mov_b32 v{L+1}, 0"]
    else:
        o+= [f"v_fma_f32 v{TM+2}, v{TM}, s28, -v{MC}", f"v_fma_f32 v{TM+3}, v{TM+4}, s28, -v{MC+1}", f"v_max_f32 v{TM+2}, v{TM+2}, v{TM+3}",
             f"v_cmp_lt_f32 vcc, s29, v{TM+2}", "s_nop 1", f"s_cbranch_vccnz RB1_{uid}\nRB1R_{uid}:"]
    for qb in range(2):
        S=SB[sb]+16*qb
        for g in range(4):
            r=[S+4*g+i for i in range(4)]
            o+= [f"v_cvt_pk_bf16_f32 v{x}, 0, v{x}" for x in r]
            o+= [f"v_fma_f32 v{x}, v{x}, s28, -v{MC+qb}" for x in r]
            o+= [f"v_exp_f32 v{x}, v{x}" for x in r]
            o+= [f"v_add_f32 v{L+qb}, v{L+qb}, v{x}" for x in r]
            o+= [f"v_cvt_pk_bf16_f32 v{S+2*g}, v{r[0]}, v{r[1]}", f"v_cvt_pk_bf16_f32 v{S+2*g+1}, v{r[2]}, v{r[3]}"]
    return [(x, 2 if x.startswith("v_exp") else 1) for x in o]
def rare_blocks(a, uid):
    a(f"RB1_{uid}:")
    for qb in range(2):
        t=TM+4*qb
        a(f"""v_mul_f32 v{t+2}, s28, v{t}
        v_max_f32 v{t+2}, v{t+2}, v{MC+qb}
        v_sub_f32 v{AL+qb}, v{MC+qb}, v{t+2}
        v_exp_f32 v{AL+qb}, v{AL+qb}
        v_mov_b32 v{MC+qb}, v{t+2}
        v_mul_f32 v{L+qb}, v{L+qb}, v{AL+qb}""")
    a(f"s_mov_b32 s30, 1\ns_branch RB1R_{uid}")
def rescale_block(a):
    a("RESC:\ns_nop 15\ns_nop 15")
    for db in range(8):
        for qb in range(2):
            b=(db*2+qb)*16
            for h in range(2):
                for i in range(8): a(f"v_accvgpr_read_b32 v{22+i}, a{b+8*h+i}")
                for i in range(8): a(f"v_mul_f32 v{22+i}, v{22+i}, v{AL+qb}")
                for i in range(8): a(f"v_accvgpr_write_b32 a{b+8*h+i}, v{22+i}")
    a("s_mov_b32 s30, 0\ns_nop 2\ns_setpc_b64 s[32:33]")
ISSUE={4:0,5:2,6:4,7:6,8:8,9:10,10:12,11:13,12:15,13:16,14:18,15:19}
NEXTG=[24,26,28,30]
class Sched:
    def __init__(s,a): s.a=a; s.q=[]
    def rd(s,lines,tag):
        if OPT.get('nolds'): return
        for x in lines: s.a(x); s.q.append(tag)
    def need(s,tag):
        if tag in s.q:
            i=max(k for k,t in enumerate(s.q) if t==tag)
            n=len(s.q)-1-i
            s.a(f"s_waitcnt lgkmcnt({n})"); s.q=s.q[i+1:]
def phase(sc, kind, slot, sb, nxt, dmas, fill, nfill, vm, resc_at_start=None, first_sm_gap=0):
    a=sc.a
    dg={}
    if dmas:
        gs=[1,3,5,7,9,11,14,17,20,21,22,23] if len(dmas)<=10 else list(range(1,24))
        step=len(gs)/len(dmas)
        for i,d in enumerate(dmas): dg.setdefault(gs[int(i*step)],[]).extend(d)
    for m in range(32):
        f=m>>1; qb=m&1; used=0
        if m==0 and resc_at_start is not None:
            a(f"s_cmp_eq_u32 s30, 0\ns_cbranch_scc1 NR_{resc_at_start}\ns_getpc_b64 s[32:33]\ns_add_u32 s32, s32, 12\ns_addc_u32 s33, s33, 0\ns_branch RESC\nNR_{resc_at_start}:")
        for ff,g in ISSUE.items():
            if g==m: r=frag_reads(kind,ff,slot); sc.rd(r,(kind,ff)); used+=len(r)
        if m==24 and nxt is not None:
            a(f"s_waitcnt vmcnt({vm}) lgkmcnt(0)\ns_barrier"); sc.q=[]; used+=2
        if nxt is not None and m in NEXTG:
            ff=NEXTG.index(m); r=frag_reads(nxt[0],ff,nxt[1]); sc.rd(r,(nxt[0]+'n',ff)); used+=len(r)
        if m in dg:
            for x in dg[m]: a(x)
            used+=len(dg[m])
        if m>=first_sm_gap:
            while fill and used+fill[0][1]<=nfill+ (1 if used==0 else 0):
                x,c=fill.pop(0); a(x); used+=c
        if qb==0: sc.need((kind,f))
        fr=FRAG(f)
        if kind=='K':
            S=SB[sb]+16*qb
            a(f"v_mfma_f32_32x32x16_bf16 v[{S}:{S+15}], v[{fr}:{fr+3}], {Q(qb,f)}, "+("0" if f==0 else f"v[{S}:{S+15}]"))
        else:
            db,s=f>>1,f&1; P=SB[sb]+16*qb+4*s
            a(f"v_mfma_f32_32x32x16_bf16 {O(db,qb)}, v[{fr}:{fr+3}], v[{P}:{P+3}], {O(db,qb)}")
    sc.q=[(t[0][0],t[1]) if t[0].endswith('n') else t for t in sc.q]
def flush(a,fill):
    print('flushed',len(fill))
    for x,c in fill: a(x)
    del fill[:]
OPT={}
class VM:
    def __init__(s,a): s.a=a; s.q=[]
    def add(s,tag,n=1): s.q+= [tag]*n
    def cnt(s,tag):
        i=max(k for k,t in enumerate(s.q) if t==tag); n=len(s.q)-1-i; s.q=s.q[i+1:]; return n
def k3(a, NF=5, **opt):
    OPT.clear(); OPT.update(opt)
    def stamp(i):
        if OPT.get("stamp"): a(f"s_memtime s[{60+2*i}:{61+2*i}]\ns_waitcnt lgkmcnt(0)")
    head(a,"k3_kernel")
    a(f"""s_cmp_ge_u32 s2, 256
    s_cbranch_scc1 K3_END
    s_load_dwordx4 s[4:7], s[0:1], 8
    s_load_dwordx2 s[34:35], s[0:1], 112
    v_lshrrev_b32 v20, 6, v0
    v_and_b32 v0, 63, v0
    v_readfirstlane_b32 s36, v20       ; wave
    s_and_b32 s37, s2, 7               ; kvh
    s_lshr_b32 s38, s2, 3
    s_and_b32 s40, s36, 1              ; hh
    s_lshr_b32 s41, s36, 1             ; khalf
    s_lshl_b32 s39, s37, 1
    s_add_u32 s39, s39, s40            ; head
    v_lshlrev_b32 v21, 4, v0           ; lane*16
    s_mul_i32 s42, s38, {2*28*1024}
    s_mul_i32 s43, s36, {14*1024}
    s_add_u32 s42, s42, s43
    s_waitcnt lgkmcnt(0)""")
    stamp(0)
    srd(a,16,34,2048*896,WS_HF); srd(a,44,34,448*8192,WS_WQF)
    vm=VM(a)
    for i in range(14):
        a(f"s_add_u32 m0, s43, {(i&~3)*1024}\ns_add_u32 s3, s42, {(i&~3)*1024}\nbuffer_load_dwordx4 v21, s[16:19], s3 offen offset:{(i&3)*1024} lds")
    vm.add('h',14)
    a(f"s_lshl_b32 s3, s39, 3\ns_lshl_b32 s42, s41, 2\ns_add_u32 s3, s3, s42\ns_mul_i32 s52, s3, {28*1024}")
    for dl in range(1,4): a(f"s_add_u32 s{52+dl}, s52, {dl*28*1024}")
    def wqr(ks,dl): return 32+((ks%14)*4+dl)*4
    def wq(ks):
        for dl in range(4):
            b=wqr(ks,dl)
            a(f"s_add_u32 s3, s{52+dl}, {(ks&~3)*1024}\nbuffer_load_dwordx4 v[{b}:{b+3}], v21, s[44:47], s3 offen offset:{(ks&3)*1024}")
        vm.add(('w',ks),4)
    for ks in range(8): wq(ks)
    srd(a,8,4,8<<20); srd(a,12,6,8<<20); srd(a,48,34,8*PART_SZ,WS_PART)
    a(f"""v_lshrrev_b32 v22, 5, v0
    v_xor_b32 v{VDK}, v0, v22
    v_lshlrev_b32 v{VDK}, 4, v{VDK}
    v_lshlrev_b32 v23, 2, v22
    v_xor_b32 v{VDV}, v0, v23
    v_lshlrev_b32 v{VDV}, 4, v{VDV}
    s_lshl_b32 s20, s37, 20
    s_lshl_b32 s3, s41, 19
    s_add_u32 s20, s20, s3
    s_lshl_b32 s3, s40, 13
    s_add_u32 s20, s20, s3
    s_add_u32 s21, s20, 4096
    s_mov_b32 s22, s20
    s_mov_b32 s23, s21
    s_mul_i32 s3, s41, {KT}
    s_mul_i32 s24, s40, {8*KP}
    s_add_u32 s24, s24, s3
    s_add_u32 s25, s24, {K1B}
    s_add_u32 s24, s24, {K0B}
    s_mul_i32 s3, s41, {2*VT}
    s_mul_i32 s26, s40, {8*VP}
    s_add_u32 s26, s26, s3
    s_add_u32 s27, s26, {VT}
    s_mov_b32 s28, {hex(f2u(CSC))}
    s_mov_b32 s29, {hex(f2u(THR))}
    s_mov_b32 s30, 0""")
    a(f"""v_and_b32 v24, 31, v0
    v_lshrrev_b32 v25, 1, v24
    v_mul_u32_u24 v{VK}, {KP}, v25
    v_and_b32 v25, 1, v24
    v_lshl_add_u32 v{VK}, v25, 9, v{VK}
    v_xor_b32 v25, v25, v22
    v_lshl_add_u32 v{VK}, v25, 4, v{VK}
    s_mul_i32 s3, s41, {KT}
    s_add_u32 s3, s3, {K1B}
    v_add_u32 v{VK}, s3, v{VK}
    v_bfe_u32 v24, v0, 3, 1            ; r>>1
    v_lshl_add_u32 v24, v22, 1, v24    ; 2h'+(r>>1)
    v_mul_u32_u24 v{VVE}, {VP}, v24
    v_bfe_u32 v24, v0, 2, 1            ; odd
    v_lshl_add_u32 v{VVE}, v24, 9, v{VVE}
    v_bfe_u32 v25, v0, 4, 1
    v_lshl_add_u32 v{VVE}, v25, 5, v{VVE}
    v_and_b32 v25, 3, v0
    v_lshl_add_u32 v{VVE}, v25, 3, v{VVE}
    s_mul_i32 s3, s41, {2*VT}
    v_add_u32 v{VVE}, s3, v{VVE}
    v_lshlrev_b32 v24, 6, v24
    v_sub_u32 v{VVO}, v{VVE}, v24
    v_add_u32 v{VVE}, v{VVE}, v24""")
    for i in range(160,256): a(f"v_accvgpr_write_b32 a{i}, 0")
    a(f"s_waitcnt vmcnt({vm.cnt('h')})\ns_barrier")
    stamp(1)
    def hrd(ks):
        for qb in range(2):
            b=128+((ks%4)*2+qb)*4
            a(f"ds_read_b128 a[{b}:{b+3}], v21 offset:{(qb*28+ks)*1024}")
    hrd(0); hrd(1)
    for ks in range(28):
        if ks+2<28: hrd(ks+2)
        if ks+8<28: wq(ks+8)
        if 6<=ks<22:
            for x in dma('K',(ks-6)>>3,(ks-6)&7): a(x)
            vm.add('K')
            if (ks-6)&7==7:
                for x in adv('K'): a(x)
        a(f"s_waitcnt vmcnt({vm.cnt(('w',ks))}) lgkmcnt({min(2,27-ks)*2})")
        for dl in range(4):
            for qb in range(2):
                c=(dl*2+qb)*16; b=wqr(ks,dl); hb=128+((ks%4)*2+qb)*4
                a(f"v_mfma_f32_32x32x16_bf16 a[{c}:{c+15}], v[{b}:{b+3}], a[{hb}:{hb+3}], "+("0" if ks==0 else f"a[{c}:{c+15}]"))
    stamp(2)
    a("s_barrier\ns_lshl_b32 s3, s40, 15\nv_add_u32 v25, s3, v21\ns_lshl_b32 s42, s41, 13\ns_add_u32 s3, s3, s42\nv_add_u32 v24, s3, v21\ns_nop 7")
    for dl in range(4):
        for qb in range(2):
            c=(dl*2+qb)*16; t=32+qb*24
            for i in range(16): a(f"v_accvgpr_read_b32 v{t+i}, a{c+i}")
            for i in range(8): a(f"v_cvt_pk_bf16_f32 v{t+16+i}, v{t+2*i}, v{t+2*i+1}")
            for h in range(2): a(f"ds_write_b128 v24, v[{t+16+4*h}:{t+19+4*h}] offset:{qb*16384+(2*dl+h)*1024}")
    a("s_waitcnt lgkmcnt(0)\ns_barrier")
    for s in range(16):
        for qb in range(2): a(f"ds_read_b128 {Q(qb,s)}, v25 offset:{qb*16384+s*1024}")
    for i in range(0,40): a(f"v_accvgpr_write_b32 a{i}, 0")
    a("s_waitcnt vmcnt(0) lgkmcnt(0)\ns_barrier")
    for p in range(8):
        for x in dma('V',0,p): a(x)
    for x in adv('V'): a(x)
    stamp(3)
    sc=Sched(a)
    for f in range(4): sc.rd(frag_reads('K',f,0),('K',f))
    D=lambda k,s:[dma(k,s,p) for p in range(8)]+[adv(k)]
    fill=[(f"v_accvgpr_write_b32 a{i}, 0",1) for i in range(40,160)]
    phase(sc,'K',0,0,('K',1),[],fill,NF,8); flush(a,fill)
    fill=softmax(0,True,"i0")
    phase(sc,'K',1,1,('V',0),D('K',0)+D('V',1),fill,7,16,first_sm_gap=3); flush(a,fill)
    if OPT.get("stamp"): a("s_memtime s[68:69]")
    a("s_mov_b32 s31, 15\ns_nop 1\nK3_LOOP:")
    st=list(sc.q)
    for par in (1,0):
        fill=softmax(par,False,f"l{par}")
        phase(sc,'V',1-par,1-par,('K',1-par),D('K',par),fill,NF,16,first_sm_gap=3)
        phase(sc,'K',1-par,1-par,('V',par),D('V',1-par),fill,NF,16,resc_at_start=f"l{par}"); flush(a,fill)
    assert st==sc.q,(st,sc.q)
    a("s_sub_u32 s31, s31, 1\ns_cmp_lg_u32 s31, 0\ns_cbranch_scc1 K3_LOOP")
    if OPT.get("stamp"): a("s_memtime s[70:71]")
    srd(a,44,34,4096*896,WS_WOF)
    a(f"""s_mul_i32 s56, s36, 3             ; nb0
    s_mul_i32 s52, s37, {32*14}
    s_add_u32 s53, s52, s41
    s_add_u32 s53, s53, 12
    s_lshl_b32 s53, s53, 10
    s_add_u32 s52, s52, s56
    s_lshl_b32 s52, s52, 10""")
    def wo(g):
        p,k=g>>5,g&31; b=128+(g%32)*4
        return [f"s_add_u32 s3, s{52 if p<3 else 53}, {k*14336+(p%3)*1024 if p<3 else k*14336}", f"buffer_load_dwordx4 v[{b}:{b+3}], v21, s[44:47], s3 offen"]
    fill=softmax(1,False,"t")
    phase(sc,'V',0,0,('V',1),[],fill,7,0,first_sm_gap=3); flush(a,fill)
    a("s_nop 1")
    phase(sc,'V',1,1,None,[wo(4*k)+wo(4*k+1)+wo(4*k+2)+wo(4*k+3) for k in range(7)],[],NF,0,resc_at_start="t")
    stamp(6)
    a(f"""v_mov_b32 v{TM}, v{L}
    v_mov_b32 v{TM+1}, v{L+1}
    s_lshl_b32 s3, s36, 10
    v_permlane32_swap_b32 v{L}, v{TM}
    v_permlane32_swap_b32 v{L+1}, v{TM+1}
    s_add_u32 s3, s3, 131072
    v_add_u32 v26, s3, v21
    v_add_f32 v{L}, v{L}, v{TM}
    v_add_f32 v{L+1}, v{L+1}, v{TM+1}
    s_xor_b32 s3, s3, 2048
    v_add_u32 v27, s3, v21
    ds_write_b128 v26, v[{MC}:{MC+3}]
    s_lshl_b32 s3, s36, 15
    v_add_u32 v24, s3, v21
    s_xor_b32 s3, s3, 65536
    v_add_u32 v25, s3, v21
    s_nop 7
    s_barrier
    s_cmp_eq_u32 s41, 0
    s_cbranch_scc0 EPI1""")
    for kh in range(2):
        if kh==1: a("EPI1:")
        for t in range(8):
            b=((4*(1-kh)+(t>>1))*2+(t&1))*16
            for i in range(4): a(f"ds_write_b128 v24, a[{b+4*i}:{b+4*i+3}] offset:{(t*4+i)*1024}")
        a("s_waitcnt lgkmcnt(0)\ns_barrier\nds_read_b128 v[12:15], v27")
        q=['m']
        def xr(t):
            for i in range(4): a(f"ds_read_b128 v[{64+(t%4)*16+4*i}:{67+(t%4)*16+4*i}], v25 offset:{(t*4+i)*1024}"); q.append(t)
        for t in range(3): xr(t)
        a("s_waitcnt lgkmcnt(12)"); del q[0]
        for qb in range(2):
            fo=28 if qb==0 else 16
            a(f"""v_max_f32 v10, v{MC+qb}, v{12+qb}
            v_sub_f32 v11, v{MC+qb}, v10
            v_sub_f32 v10, v{12+qb}, v10
            v_exp_f32 v11, v11
            v_exp_f32 v10, v10
            s_nop 0
            v_mul_f32 v{fo}, v10, v{14+qb}
            v_fma_f32 v{fo}, v11, v{L+qb}, v{fo}
            v_rcp_f32 v{fo+1}, v{fo}
            s_nop 0
            v_mul_f32 v{fo+2}, v10, v{fo+1}
            v_mul_f32 v{fo+3}, v10, v{fo+1}
            v_mul_f32 v{fo}, v11, v{fo+1}
            v_mul_f32 v{fo+1}, v11, v{fo+1}""")
        for t in range(8):
            b=((4*kh+(t>>1))*2+(t&1))*16; r=32+(t&1)*16; x=64+(t%4)*16; fo=28 if (t&1)==0 else 16
            if t+3<8: xr(t+3)
            for i in range(16): a(f"v_accvgpr_read_b32 v{r+i}, a{b+i}")
            for i in range(8): a(f"v_pk_mul_f32 v[{r+2*i}:{r+2*i+1}], v[{r+2*i}:{r+2*i+1}], v[{fo}:{fo+1}]")
            j=max(k for k,u in enumerate(q) if u==t); a(f"s_waitcnt lgkmcnt({min(15,len(q)-1-j)})"); del q[:j+1]
            for i in range(8): a(f"v_pk_fma_f32 v[{r+2*i}:{r+2*i+1}], v[{x+2*i}:{x+2*i+1}], v[{fo+2}:{fo+3}], v[{r+2*i}:{r+2*i+1}]")
            for i in range(8): a(f"v_cvt_pk_bf16_f32 v{x+i}, v{r+2*i}, v{r+2*i+1}")
            for h in range(2): a(f"ds_write_b128 v25, v[{x+4*h}:{x+4*h+3}] offset:{t*4096+h*1024}"); q.append('w')
        if kh==0: a("s_branch EPI2")
    a(f"""EPI2:
    v_add_u32 v26, 65536, v21
    s_lshl_b32 s3, s40, 12
    v_add_u32 v27, s3, v21
    v_add_u32 v28, s3, v26
    v_and_b32 v24, 31, v0
    v_lshlrev_b32 v24, 2, v24
    v_lshrrev_b32 v22, 5, v0
    v_mul_u32_u24 v22, {4*1792}, v22
    v_add_u32 v24, v22, v24
    s_mul_i32 s42, s37, {PART_SZ}
    s_mul_i32 s3, s38, {64*1792}
    s_add_u32 s42, s42, s3
    s_mul_i32 s3, s40, {32*1792}
    s_add_u32 s43, s42, s3
    s_lshl_b32 s3, s41, 7
    s_add_u32 s43, s43, s3
    s_add_u32 s43, s43, {12*128}
    s_lshl_b32 s3, s56, 7
    s_add_u32 s42, s42, s3
    s_waitcnt lgkmcnt(0)
    s_barrier""")
    stamp(1)
    vq=[('w',g) for g in range(28)]
    def yrd(g):
        p,k=g>>5,g&31
        hh,kh,dbl,s_=k>>4,(k>>3)&1,(k>>1)&3,k&1
        reg=(hh+2*kh)^2
        for qb in range(2 if p<3 else 1):
            off=reg*32768+(dbl*2+qb)*4096+s_*1024; b=32+((g%4)*2+qb)*4
            base=(21 if off<65536 else 26) if p<3 else (27 if off<65536 else 28)
            a(f"ds_read_b128 v[{b}:{b+3}], v{base} offset:{off%65536}")
    def stores(p):
        o=[]
        for qb in range(2 if p<3 else 1):
            for r in range(16):
                o.append([f"s_add_u32 s3, s{42 if p<3 else 43}, {(32*qb+8*(r>>2)+(r&3))*1792+(p*128 if p<3 else 0)}", f"buffer_store_dword a{(p*2+qb)*16+r}, v24, s[48:51], s3 offen"])
        return o
    yrd(0); yrd(1)
    pend=[]
    for g in range(128):
        p,k=g>>5,g&31
        if k==4 and p>0: pend=stores(p-1)
        if g+2<128: yrd(g+2)
        if g+28<128:
            for x in wo(g+28): a(x)
            vq.append(('w',g+28))
        for _ in range(2):
            if pend:
                for x in pend.pop(0): a(x)
                vq.append('s')
        j=vq.index(('w',g)); nv=len(vq)-1-j; del vq[:j+1]
        nl=sum((2 if ((g+d)>>5)<3 else 1) for d in (1,2) if g+d<128)
        a(f"s_waitcnt vmcnt({min(63,nv)}) lgkmcnt({nl})")
        for qb in range(2 if p<3 else 1):
            c=(p*2+qb)*16; b=128+(g%32)*4; yb=32+((g%4)*2+qb)*4
            a(f"v_mfma_f32_32x32x16_bf16 a[{c}:{c+15}], v[{yb}:{yb+3}], v[{b}:{b+3}], "+("0" if k==0 else f"a[{c}:{c+15}]"))
    stamp(2)
    a("s_nop 15")
    for x in stores(3):
        for y in x: a(y)
    if OPT.get("stamp"):
        stamp(3); a("s_waitcnt vmcnt(0)"); stamp(7)
        a("s_load_dwordx2 s[4:5], s[0:1], 104\ns_waitcnt lgkmcnt(0)"); srd(a,8,4,256)
        a(f"s_cmp_lg_u32 s2, 77\ns_cbranch_scc1 K3_END\ns_lshl_b32 s3, s36, 5")
        for i in range(8): a(f"s_sub_u32 s4, s{60+2*i}, s60\nv_mov_b32 v1, s4\nv_mov_b32 v2, 0\nbuffer_store_dword v1, v2, s[8:11], s3 offen offset:{4*i}")
    a("K3_END:\ns_endpgm")
    for u in ("l1","l0","t"): rare_blocks(a,u)
    rescale_block(a)
    return desc("k3_kernel",512,80,256)

def k4(a):
    head(a,"k4_kernel")
    a(f"""s_cmp_ge_u32 s2, 256
    s_cbranch_scc1 K4_END
    s_load_dwordx2 s[34:35], s[0:1], 112
    v_lshrrev_b32 v2, 6, v0
    v_and_b32 v0, 63, v0
    v_readfirstlane_b32 s36, v2
    s_and_b32 s37, s2, 1               ; nh
    s_bfe_u32 s38, s2, 0x20001         ; ksplit
    s_lshr_b32 s39, s2, 3              ; qt
    v_lshlrev_b32 v1, 4, v0
    s_waitcnt lgkmcnt(0)""")
    srd(a,8,34,2048*8192,WS_OF); srd(a,12,34,4096*896,WS_WOF); srd(a,16,34,4*PART_SZ,WS_PART)
    a(f"""s_lshl_b32 s40, s38, 6
    s_lshl_b32 s3, s36, 4
    s_add_u32 s40, s40, s3             ; kstep0
    s_lshl_b32 s20, s39, 9
    s_add_u32 s20, s20, s40
    s_lshl_b32 s20, s20, 10
    s_add_u32 s21, s20, 262144
    s_mul_i32 s22, s40, 14
    s_mul_i32 s3, s37, 7
    s_add_u32 s22, s22, s3
    s_lshl_b32 s22, s22, 10""")
    NS=6
    def ld(k):
        b=16+(k%NS)*36
        for qb in range(2): a(f"s_add_u32 s3, s{20+qb}, {(k&~3)*1024}\nbuffer_load_dwordx4 v[{b+4*qb}:{b+4*qb+3}], v1, s[8:11], s3 offen offset:{(k&3)*1024}")
        for n in range(7): a(f"s_add_u32 s3, s22, {k*14336+(n&~3)*1024}\nbuffer_load_dwordx4 v[{b+8+4*n}:{b+11+4*n}], v1, s[12:15], s3 offen offset:{(n&3)*1024}")
    for k in range(NS-1): ld(k)
    for k in range(16):
        if k+NS-1<16: ld(k+NS-1)
        a(f"s_waitcnt vmcnt({9*min(NS-1,15-k)})")
        b=16+(k%NS)*36
        for n in range(7):
            for qb in range(2):
                c=(n*2+qb)*16
                a(f"v_mfma_f32_32x32x16_bf16 a[{c}:{c+15}], v[{b+8+4*n}:{b+11+4*n}], v[{b+4*qb}:{b+4*qb+3}], "+("0" if k==0 else f"a[{c}:{c+15}]"))
    RS=912; WR=32*RS
    a(f"""v_and_b32 v2, 31, v0
    v_mul_u32_u24 v2, {RS}, v2
    v_lshrrev_b32 v3, 5, v0
    v_lshl_add_u32 v2, v3, 4, v2
    s_mul_i32 s3, s36, {WR}
    v_add_u32 v2, s3, v2
    s_lshl_b32 s41, s36, 3""")
    for i in range(7):
        a(f"""v_add_u32 v4, {i*64}, v0
        v_mul_u32_u24 v5, 1171, v4
        v_lshrrev_b32 v5, 16, v5
        v_mul_u32_u24 v6, 56, v5
        v_sub_u32 v6, v4, v6
        v_add_u32 v5, s41, v5
        v_mul_u32_u24 v{16+i}, {RS}, v5
        v_lshl_add_u32 v{16+i}, v6, 4, v{16+i}
        v_add_u32 v{32+i}, {2*WR}, v{16+i}
        v_mul_u32_u24 v{24+i}, 1792, v5
        v_lshl_add_u32 v{24+i}, v6, 4, v{24+i}""")
    a(f"""s_mul_i32 s42, s38, {PART_SZ}
    s_mul_i32 s3, s39, {64*1792}
    s_add_u32 s42, s42, s3
    s_mul_i32 s3, s37, 896
    s_add_u32 s42, s42, s3
    s_nop 7""")
    for t in range(2):
        if t: a("s_barrier")
        for n in range(7):
            for q in range(4):
                c=(n*2+t)*16+4*q
                a(f"ds_write_b128 v2, a[{c}:{c+3}] offset:{n*128+q*32}")
        a("s_waitcnt lgkmcnt(0)\ns_barrier")
        for i in range(7):
            for s in range(4):
                b=48+(i*4+s)*4
                a(f"ds_read_b128 v[{b}:{b+3}], v{(16 if s<2 else 32)+i} offset:{(s&1)*WR}")
        a(f"s_add_u32 s3, s42, {t*32*1792}")
        for i in range(7):
            b=48+i*16
            a(f"s_waitcnt lgkmcnt({min(15,(6-i)*4)})")
            for c in range(4): a(f"v_add_f32 v{b+c}, v{b+c}, v{b+4+c}\nv_add_f32 v{b+8+c}, v{b+8+c}, v{b+12+c}\nv_add_f32 v{b+c}, v{b+c}, v{b+8+c}")
            a(f"buffer_store_dwordx4 v[{b}:{b+3}], v{24+i}, s[16:19], s3 offen")
    a("K4_END:\ns_endpgm")
    return desc("k4_kernel",480,48,256)
```

```python
NAME = "adaLN_cond__gqa_block_cached__moe_arch_mod__prompt"
WS_MOD=0x0; WS_WQF=0x10000; WS_WOF=0x400000; WS_HF=0x800000; WS_OF=0xA00000
WS_PART=0x1A00000; WS_X1=0x3800000; WS_H2=0x3A00000; WS_R=0x3C00000; WS_YP=0x3C10000
PART_SZ=2048*448*4
class A:
    def __init__(s): s.l=[]
    def __call__(s, t):
        for x in t.strip("\n").split("\n"): s.l.append("    "+x.strip() if not x.strip().endswith(":") else x.strip())
    def text(s): return "\n".join(s.l)+"\n"
def srd(a, d, ptr, nbytes, off=0):
    if off:
        a(f"s_add_u32 s{d}, s{ptr}, {hex(off)}\ns_addc_u32 s{d+1}, s{ptr+1}, 0")
    else:
        a(f"s_mov_b32 s{d}, s{ptr}\ns_mov_b32 s{d+1}, s{ptr+1}")
    a(f"s_mov_b32 s{d+2}, {hex(nbytes)}\ns_mov_b32 s{d+3}, 0x00020000")
def head(a, name):
    a(f".globl {name}\n.p2align 8\n.type {name},@function\n{name}:")
def desc(name, vgpr, sgpr, accum):
    return f""".amdhsa_kernel {name}
  .amdhsa_next_free_vgpr {vgpr}
  .amdhsa_next_free_sgpr {sgpr}
  .amdhsa_accum_offset {accum}
  .amdhsa_group_segment_fixed_size 0
  .amdhsa_kernarg_size 120
  .amdhsa_user_sgpr_count 2
  .amdhsa_user_sgpr_kernarg_segment_ptr 1
  .amdhsa_system_sgpr_workgroup_id_x 1
.end_amdhsa_kernel
.p2align 6
"""
def rnd(a, v, src=None):
    a(f"v_cvt_pk_bf16_f32 v{v}, 0, v{src if src is not None else v}")
def wave_red(a, v, t, op="v_add_f32"):
    for m in ["quad_perm:[1,0,3,2]","quad_perm:[2,3,0,1]","row_half_mirror","row_mirror"]:
        a(f"s_nop 1\n{op}_dpp v{v}, v{v}, v{v} {m} row_mask:0xf bank_mask:0xf")
    for sw in ["v_permlane16_swap_b32","v_permlane32_swap_b32"]:
        a(f"v_mov_b32 v{t}, v{v}\ns_nop 1\n{sw} v{v}, v{t}\ns_nop 1\n{op} v{v}, v{v}, v{t}")
def unpack8(a, dst, src):
    for i in range(4):
        a(f"v_lshlrev_b32 v{dst+2*i}, 16, v{src+i}\nv_and_b32 v{dst+2*i+1}, 0xffff0000, v{src+i}")
def pack8(a, dst, src):
    for i in range(4):
        a(f"v_cvt_pk_bf16_f32 v{dst+i}, v{src+2*i}, v{src+2*i+1}")
def layernorm(a, X, D, T, M):
    a(f"v_add_f32 v{T}, v{X}, v{X+1}")
    for i in range(2,8): a(f"v_add_f32 v{T}, v{T}, v{X+i}")
    a(f"v_mul_f32 v{T}, v{T}, v{M}")
    wave_red(a, T, T+1)
    a(f"v_mul_f32 v{T}, {hex(f2u(1.0/448))}, v{T}")
    for i in range(8): a(f"v_sub_f32 v{D+i}, v{X+i}, v{T}")
    a(f"v_mul_f32 v{T+2}, v{D}, v{D}")
    for i in range(1,8): a(f"v_fmac_f32 v{T+2}, v{D+i}, v{D+i}")
    a(f"v_mul_f32 v{T+2}, v{T+2}, v{M}")
    wave_red(a, T+2, T+1)
    a(f"v_mul_f32 v{T+2}, {hex(f2u(1.0/448))}, v{T+2}")
    rnd(a, T); rnd(a, T+2)
    a(f"v_add_f32 v{T+2}, {hex(f2u(1e-5))}, v{T+2}"); rnd(a, T+2)
    a(f"v_sqrt_f32 v{T+2}, v{T+2}\ns_nop 0"); rnd(a, T+2)
    a(f"v_rcp_f32 v{T+3}, v{T+2}\ns_nop 0")
    for i in range(8):
        a(f"v_sub_f32 v{D+i}, v{X+i}, v{T}"); rnd(a, D+i)
        a(f"v_mul_f32 v{T+1}, v{D+i}, v{T+3}\nv_fma_f32 v{D+i}, -v{T+1}, v{T+2}, v{D+i}\nv_fma_f32 v{D+i}, v{D+i}, v{T+3}, v{T+1}")
        rnd(a, D+i)
import struct
def f2u(f): return struct.unpack("<I", struct.pack("<f", f))[0]
```

```python
import sys
from common import *
import small, attn
def build(path, **kw):
    a=A(); d=""
    d+=small.k1(a); d+=small.k2(a); d+=attn.k3(a, **kw); d+=small.k5(a); d+=small.k6(a)
    ref=open(f"cdna_kernels/{NAME}.s.ref").read().split("; Override launch")[0]
    hdr=ref+"""; @launch kernel=k1_kernel grid=(564,1,1) block=(256,1,1) lds=16640
; @launch kernel=k2_kernel grid=(512,1,1) block=(256,1,1) lds=0
; @launch kernel=k3_kernel grid=(256,1,1) block=(256,1,1) lds=163840
; @launch kernel=k5_kernel grid=(512,1,1) block=(256,1,1) lds=0
; @launch kernel=k6_kernel grid=(56,1,1) block=(256,1,1) lds=16384
.amdgcn_target "amdgcn-amd-amdhsa--gfx950"
.text
"""
    open(path,"w").write(hdr+a.text()+'.section .rodata,"a"\n.p2align 6\n'+d)
if __name__=="__main__":
    build(f"cdna_kernels/{NAME}.s")
```

```python
from common import *
LOG2E=1.4426950408889634
def k1(a):
    head(a,"k1_kernel")
    a("s_cmp_ge_u32 s2, 522\ns_cbranch_scc1 K1_END")
    a("s_load_dwordx4 s[4:7], s[0:1], 24\ns_load_dwordx4 s[8:11], s[0:1], 80\ns_load_dwordx2 s[12:13], s[0:1], 112\ns_waitcnt lgkmcnt(0)")
    a("s_mov_b32 s30, 0x05040100\ns_mov_b32 s31, 0x07060302")
    a("s_cmp_ge_u32 s2, 42\ns_cbranch_scc1 K1_W")
    srd(a,16,8,896); srd(a,20,10,448*5376); srd(a,24,12,2688*4,WS_MOD)
    a(f"""v_lshlrev_b32 v1, 1, v0
    buffer_load_ushort v2, v1, s[16:19], 0 offen
    buffer_load_ushort v3, v1, s[16:19], 0 offen offset:512
    v_and_b32 v4, 31, v0
    v_lshrrev_b32 v5, 5, v0
    v_mul_u32_u24 v6, {56*5376}, v5
    v_lshl_add_u32 v6, v4, 2, v6
    s_lshl_b32 s3, s2, 7""")
    for i in range(56):
        a(f"s_add_u32 s14, s3, {i*5376}\nbuffer_load_dword v{16+i}, v6, s[20:23], s14 offen")
    a("s_waitcnt vmcnt(56)")
    for r in (2,3):
        a(f"""v_lshlrev_b32 v{r}, 16, v{r}
        v_mul_f32 v7, {hex(f2u(-LOG2E))}, v{r}
        v_exp_f32 v7, v7
        s_nop 0
        v_add_f32 v7, 1.0, v7
        v_rcp_f32 v7, v7
        s_nop 0
        v_mul_f32 v{r}, v{r}, v7""")
        rnd(a,r)
    a(f"""v_lshlrev_b32 v7, 2, v0
    ds_write_b32 v7, v2
    ds_write_b32 v7, v3 offset:1024
    s_waitcnt lgkmcnt(0)
    s_barrier
    v_mul_u32_u24 v7, 224, v5""")
    for i in range(14): a(f"ds_read_b128 v[{72+4*i}:{75+4*i}], v7 offset:{16*i}")
    a("v_mov_b32 v8, 0\nv_mov_b32 v9, 0\ns_waitcnt vmcnt(0) lgkmcnt(0)")
    for i in range(56):
        a(f"v_lshlrev_b32 v10, 16, v{16+i}\nv_and_b32 v11, 0xffff0000, v{16+i}\nv_fmac_f32 v8, v10, v{72+i}\nv_fmac_f32 v9, v11, v{72+i}")
    a(f"""v_lshlrev_b32 v7, 3, v0
    ds_write_b64 v7, v[8:9] offset:4096
    s_waitcnt lgkmcnt(0)
    s_barrier
    v_cmp_gt_u32 vcc, 64, v0
    s_and_saveexec_b64 s[14:15], vcc
    s_cbranch_execz K1_END
    v_lshlrev_b32 v7, 2, v0""")
    for g in range(8): a(f"ds_read_b32 v{16+g}, v7 offset:{4096+256*g}")
    a("s_waitcnt lgkmcnt(0)")
    for g in range(1,8): a(f"v_add_f32 v16, v16, v{16+g}")
    rnd(a,16)
    a("s_lshl_b32 s3, s2, 8\nbuffer_store_dword v16, v7, s[24:27], s3 offen\ns_endpgm")
    a("K1_W:\ns_cmp_ge_u32 s2, 266\ns_cbranch_scc1 K1_WO")
    srd(a,16,4,448*8192); srd(a,20,12,448*8192,WS_WQF)
    a(f"""v_lshrrev_b32 v1, 6, v0
    s_sub_u32 s3, s2, 42
    s_nop 0
    v_readfirstlane_b32 s14, v1
    s_lshl_b32 s3, s3, 2
    s_add_u32 s3, s3, s14
    s_and_b32 s14, s3, 1           ; hh
    s_lshr_b32 s15, s3, 1
    s_mul_hi_u32 s28, s15, {(2**32+27)//28}   ; head
    s_mul_i32 s29, s28, 28
    s_sub_u32 s29, s15, s29        ; ks
    s_lshl_b32 s32, s29, 1
    s_add_u32 s32, s32, s14
    s_lshl_b32 s32, s32, 16        ; (16ks+8hh)*8192
    s_lshl_b32 s33, s28, 9
    s_add_u32 s32, s32, s33        ; + head*512
    v_and_b32 v2, 63, v0
    v_lshlrev_b32 v3, 3, v2""")
    for e in range(8): a(f"s_add_u32 s33, s32, {e*8192}\nbuffer_load_dwordx2 v[{16+2*e}:{17+2*e}], v3, s[16:19], s33 offen")
    a(f"""v_lshrrev_b32 v4, 3, v2
    v_mul_u32_u24 v4, {28*1024}, v4
    v_and_b32 v5, 4, v2
    v_lshl_add_u32 v4, v5, 6, v4
    v_and_b32 v5, 1, v2
    v_lshl_add_u32 v4, v5, 7, v4
    v_and_b32 v5, 2, v2
    v_lshl_add_u32 v4, v5, 5, v4
    s_mul_i32 s33, s28, {8*28*1024}
    s_lshl_b32 s34, s29, 10
    s_add_u32 s33, s33, s34
    s_lshl_b32 s34, s14, 9
    s_add_u32 s33, s33, s34
    s_branch K1_TR""")
    a("K1_WO:")
    srd(a,16,6,4096*896); srd(a,20,12,4096*896,WS_WOF)
    a(f"""v_cmp_gt_u32 vcc, 224, v0
    s_and_saveexec_b64 s[14:15], vcc
    s_cbranch_execz K1_END
    s_sub_u32 s3, s2, 266
    v_cmp_le_u32 vcc, 112, v0
    v_mov_b32 v5, 0
    s_nop 0
    v_cndmask_b32 v1, v5, 1, vcc   ; h'
    v_mul_u32_u24 v2, 112, v1
    v_sub_u32 v2, v0, v2           ; g
    v_mul_u32_u24 v3, {4*896}, v1
    v_lshl_add_u32 v3, v2, 3, v3
    s_mul_i32 s32, s3, {16*896}""")
    for e in range(8): a(f"s_add_u32 s33, s32, {(8*(e>>2)+(e&3))*896}\nbuffer_load_dwordx2 v[{16+2*e}:{17+2*e}], v3, s[16:19], s33 offen")
    a(f"""v_lshrrev_b32 v4, 3, v2
    v_lshlrev_b32 v4, 10, v4
    v_lshl_add_u32 v4, v1, 9, v4
    v_and_b32 v5, 7, v2
    v_lshl_add_u32 v4, v5, 6, v4
    s_mul_i32 s33, s3, {14*1024}""")
    a("K1_TR:\ns_waitcnt vmcnt(0)")
    for b in range(4):
        for p in range(4):
            a(f"v_perm_b32 v{32+4*b+p}, v{16+4*p+2+(b>>1)}, v{16+4*p+(b>>1)}, s{30+(b&1)}")
    for b in range(4): a(f"buffer_store_dwordx4 v[{32+4*b}:{35+4*b}], v4, s[20:23], s33 offen offset:{16*b}")
    a("K1_END:\ns_endpgm")
    return desc("k1_kernel",128,40,128)

def rowsetup(a, nwg, end):
    a(f"""s_cmp_ge_u32 s2, {nwg}
    s_cbranch_scc1 {end}
    v_lshrrev_b32 v1, 6, v0
    s_nop 0
    v_readfirstlane_b32 s3, v1
    s_lshl_b32 s4, s2, 2
    s_add_u32 s3, s3, s4
    v_and_b32 v1, 63, v0
    v_cmp_gt_u32 vcc, 56, v1
    v_mov_b32 v2, 0
    s_nop 0
    v_cndmask_b32 v2, v2, 1.0, vcc""")
def k2(a):
    head(a,"k2_kernel")
    rowsetup(a,512,"K2_END")
    a("s_load_dwordx2 s[4:5], s[0:1], 0\ns_load_dwordx2 s[12:13], s[0:1], 112\ns_waitcnt lgkmcnt(0)")
    srd(a,16,4,2048*896); srd(a,20,12,2688*4,WS_MOD); srd(a,24,12,2048*896,WS_HF)
    a(f"""v_lshlrev_b32 v3, 4, v1
    s_mul_i32 s6, s3, 896
    buffer_load_dwordx4 v[4:7], v3, s[16:19], s6 offen
    v_lshlrev_b32 v8, 5, v1
    buffer_load_dwordx4 v[40:43], v8, s[20:23], 0 offen
    buffer_load_dwordx4 v[44:47], v8, s[20:23], 0 offen offset:16
    buffer_load_dwordx4 v[48:51], v8, s[20:23], 0 offen offset:1792
    buffer_load_dwordx4 v[52:55], v8, s[20:23], 0 offen offset:1808
    s_waitcnt vmcnt(4)""")
    unpack8(a,16,4)
    layernorm(a,16,24,32,2)
    a("s_waitcnt vmcnt(0)")
    for i in range(8):
        a(f"v_add_f32 v{48+i}, 1.0, v{48+i}"); rnd(a,48+i)
        a(f"v_mul_f32 v{24+i}, v{24+i}, v{48+i}"); rnd(a,24+i)
        a(f"v_add_f32 v{24+i}, v{24+i}, v{40+i}")
    pack8(a,4,24)
    a(f"""s_lshr_b32 s6, s3, 5
    s_mul_i32 s6, s6, {28*1024}
    s_and_b32 s7, s3, 31
    s_lshl_b32 s7, s7, 4
    s_add_u32 s6, s6, s7
    v_lshlrev_b32 v3, 9, v1
    v_cmp_gt_u32 vcc, 56, v1
    s_and_saveexec_b64 s[14:15], vcc
    buffer_store_dwordx4 v[4:7], v3, s[24:27], s6 offen
    K2_END:
    s_endpgm""")
    return desc("k2_kernel",64,40,64)

def k5(a):
    head(a,"k5_kernel")
    rowsetup(a,512,"K5_END")
    a("s_load_dwordx2 s[4:5], s[0:1], 0\ns_load_dwordx2 s[8:9], s[0:1], 48\ns_load_dwordx2 s[10:11], s[0:1], 96\ns_load_dwordx2 s[12:13], s[0:1], 112\ns_waitcnt lgkmcnt(0)")
    srd(a,16,4,2048*896); srd(a,20,12,2688*4,WS_MOD); srd(a,24,12,8*PART_SZ,WS_PART); srd(a,28,8,896)
    srd(a,32,10,2048*896); srd(a,36,12,2048*896,WS_X1); srd(a,40,12,2048*896,WS_H2); srd(a,44,12,8192,WS_R)
    a(f"v_lshlrev_b32 v3, 4, v1\nv_lshlrev_b32 v8, 5, v1\ns_mul_i32 s6, s3, 896\ns_lshl_b32 s7, s6, 1")
    for p in range(8):
        b=(64 if p<4 else 96)+8*p
        a(f"s_add_u32 s14, s7, {p*PART_SZ}\nbuffer_load_dwordx4 v[{b}:{b+3}], v8, s[24:27], s14 offen\nbuffer_load_dwordx4 v[{b+4}:{b+7}], v8, s[24:27], s14 offen offset:16")
    a("buffer_load_dwordx4 v[4:7], v3, s[16:19], s6 offen\nbuffer_load_dwordx4 v[12:15], v3, s[28:31], 0 offen")
    for m in range(2,6):
        a(f"s_mov_b32 s14, {m*1792}\nbuffer_load_dwordx4 v[{96+8*(m-2)}:{99+8*(m-2)}], v8, s[20:23], s14 offen\nbuffer_load_dwordx4 v[{100+8*(m-2)}:{103+8*(m-2)}], v8, s[20:23], s14 offen offset:16")
    a("s_waitcnt vmcnt(6)")
    unpack8(a,16,4)
    for i in range(8):
        a(f"v_add_f32 v{64+i}, v{64+i}, v{72+i}\nv_add_f32 v{80+i}, v{80+i}, v{88+i}\nv_add_f32 v{64+i}, v{64+i}, v{80+i}")
        a(f"v_add_f32 v{128+i}, v{128+i}, v{136+i}\nv_add_f32 v{144+i}, v{144+i}, v{152+i}\nv_add_f32 v{128+i}, v{128+i}, v{144+i}\nv_add_f32 v{64+i}, v{64+i}, v{128+i}"); rnd(a,64+i)
        a(f"v_mul_f32 v{64+i}, v{64+i}, v{96+i}"); rnd(a,64+i)
        a(f"v_add_f32 v{16+i}, v{16+i}, v{64+i}"); rnd(a,16+i)
    layernorm(a,16,24,32,2)
    a("s_waitcnt vmcnt(0)")
    unpack8(a,40,12)
    a("v_mov_b32 v36, 0")
    for i in range(8):
        a(f"v_add_f32 v{112+i}, 1.0, v{112+i}"); rnd(a,112+i)
        a(f"v_mul_f32 v{24+i}, v{24+i}, v{112+i}"); rnd(a,24+i)
        a(f"v_add_f32 v{24+i}, v{24+i}, v{104+i}"); rnd(a,24+i)
        a(f"v_fmac_f32 v36, v{24+i}, v{40+i}")
        a(f"v_mul_f32 v{64+i}, v{24+i}, v{120+i}"); rnd(a,64+i)
        a(f"v_add_f32 v{64+i}, v{64+i}, v{16+i}")
    a("v_mul_f32 v36, v36, v2")
    wave_red(a,36,37)
    pack8(a,4,64); pack8(a,8,16); pack8(a,12,24)
    rnd(a,36)
    a(f"""v_ashrrev_i32 v37, 31, v36
    v_or_b32 v37, 0x80000000, v37
    v_xor_b32 v36, v36, v37
    v_and_b32 v36, 0xffff0000, v36
    s_sub_u32 s7, 2047, s3
    v_or_b32 v36, s7, v36
    v_cmp_gt_u32 vcc, 56, v1
    s_and_saveexec_b64 s[14:15], vcc
    buffer_store_dwordx4 v[4:7], v3, s[32:35], s6 offen
    buffer_store_dwordx4 v[8:11], v3, s[36:39], s6 offen
    buffer_store_dwordx4 v[12:15], v3, s[40:43], s6 offen
    v_cmp_eq_u32 vcc, 0, v1
    s_and_b64 exec, exec, vcc
    s_lshl_b32 s7, s3, 2
    buffer_store_dword v36, v1, s[44:47], s7 offen
    K5_END:
    s_endpgm""")
    return desc("k5_kernel",160,56,160)

def silu_like(a, v, t, sig=False):
    a(f"v_mul_f32 v{t}, {hex(f2u(-LOG2E))}, v{v}\nv_exp_f32 v{t}, v{t}\ns_nop 0\nv_add_f32 v{t}, 1.0, v{t}\nv_rcp_f32 v{t}, v{t}\ns_nop 0")
    if sig: a(f"v_mov_b32 v{v}, v{t}")
    else: a(f"v_mul_f32 v{v}, v{v}, v{t}")
    rnd(a,v)
def k6(a):
    head(a,"k6_kernel")
    a("s_cmp_ge_u32 s2, 56\ns_cbranch_scc1 K6_END")
    a("s_load_dwordx4 s[4:7], s[0:1], 56\ns_load_dwordx2 s[8:9], s[0:1], 72\ns_load_dwordx4 s[48:51], s[0:1], 96\ns_load_dwordx2 s[12:13], s[0:1], 112\ns_waitcnt lgkmcnt(0)")
    srd(a,16,4,448*3584); srd(a,20,6,448*3584); srd(a,24,8,1792*896); srd(a,28,12,8192,WS_R)
    srd(a,32,12,2048*896,WS_H2); srd(a,36,12,56*1792,WS_YP); srd(a,40,50,256); srd(a,44,48,2048*896)
    srd(a,52,12,2048*896,WS_X1); srd(a,56,12,2688*4,WS_MOD)
    a(f"""v_lshlrev_b32 v1, 5, v0
    buffer_load_dwordx4 v[4:7], v1, s[28:31], 0 offen
    buffer_load_dwordx4 v[8:11], v1, s[28:31], 0 offen offset:16
    v_and_b32 v2, 15, v0
    v_lshrrev_b32 v3, 4, v0
    v_mul_u32_u24 v12, {28*3584}, v3
    v_lshl_add_u32 v12, v2, 2, v12
    s_lshl_b32 s3, s2, 6""")
    for i in range(28):
        a(f"s_add_u32 s14, s3, {i*3584}\nbuffer_load_dword v{32+i}, v12, s[16:19], s14 offen\nbuffer_load_dword v{64+i}, v12, s[20:23], s14 offen")
    a(f"""s_waitcnt vmcnt(56)
    v_max3_u32 v4, v4, v5, v6
    v_max3_u32 v4, v4, v7, v8
    v_max3_u32 v4, v4, v9, v10
    v_max_u32 v4, v4, v11""")
    wave_red(a,4,5,"v_max_u32")
    a(f"""v_lshrrev_b32 v5, 6, v0
    v_lshlrev_b32 v5, 2, v5
    ds_write_b32 v5, v4
    s_waitcnt lgkmcnt(0)
    s_barrier
    v_mov_b32 v5, 0
    ds_read_b128 v[4:7], v5
    s_waitcnt lgkmcnt(0)
    v_max3_u32 v4, v4, v5, v6
    v_max_u32 v4, v4, v7
    s_nop 0
    v_readfirstlane_b32 s60, v4       ; key
    s_nop 3
    s_and_b32 s61, s60, 0xffff
    s_sub_u32 s61, 2047, s61          ; idx
    s_mul_i32 s62, s61, 896
    v_lshlrev_b32 v5, 2, v0
    buffer_load_dword v6, v5, s[32:35], s62 offen
    buffer_load_dword v13, v5, s[52:55], s62 offen    ; x1 pair
    v_lshlrev_b32 v14, 3, v0
    s_mov_b32 s14, {5*1792}
    buffer_load_dwordx2 v[16:17], v14, s[56:59], s14 offen
    s_mul_i32 s15, s2, {32*896}""")
    for f in range(32): a(f"s_add_u32 s14, s15, {f*896}\nbuffer_load_dword v{96+f}, v5, s[24:27], s14 offen")
    a(f"""s_waitcnt vmcnt(34)
    v_lshlrev_b32 v8, 16, v6
    v_and_b32 v9, 0xffff0000, v6
    ds_write_b64 v14, v[8:9] offset:64
    s_waitcnt lgkmcnt(0)
    s_barrier
    v_mul_u32_u24 v7, 112, v3""")
    for i in range(7): a(f"ds_read_b128 v[{128+4*i}:{131+4*i}], v7 offset:{64+16*i}")
    a("v_mov_b32 v20, 0\nv_mov_b32 v21, 0\nv_mov_b32 v22, 0\nv_mov_b32 v23, 0\ns_waitcnt lgkmcnt(0)")
    for i in range(28):
        a(f"v_lshlrev_b32 v10, 16, v{32+i}\nv_and_b32 v11, 0xffff0000, v{32+i}\nv_fmac_f32 v20, v10, v{128+i}\nv_fmac_f32 v21, v11, v{128+i}")
        a(f"v_lshlrev_b32 v10, 16, v{64+i}\nv_and_b32 v11, 0xffff0000, v{64+i}\nv_fmac_f32 v22, v10, v{128+i}\nv_fmac_f32 v23, v11, v{128+i}")
    a(f"""v_lshlrev_b32 v7, 4, v0
    ds_write_b128 v7, v[20:23] offset:4096
    s_waitcnt lgkmcnt(0)
    s_barrier
    v_lshlrev_b32 v7, 4, v2""")
    for g in range(16): a(f"ds_read_b128 v[{128+4*g}:{131+4*g}], v7 offset:{4096+256*g}")
    a("s_waitcnt lgkmcnt(0)")
    for g in range(1,16):
        for c in range(4): a(f"v_add_f32 v{128+c}, v{128+c}, v{128+4*g+c}")
    for c in range(4): rnd(a,128+c)
    silu_like(a,128,10); silu_like(a,129,10)
    a("v_mul_f32 v128, v128, v130\nv_mul_f32 v129, v129, v131"); rnd(a,128); rnd(a,129)
    a(f"""v_lshlrev_b32 v7, 3, v2
    s_barrier
    ds_write_b64 v7, v[128:129] offset:8192
    s_waitcnt lgkmcnt(0)
    s_barrier
    v_mov_b32 v7, 0""")
    for i in range(8): a(f"ds_read_b128 v[{128+4*i}:{131+4*i}], v7 offset:{8192+16*i}")
    a("v_mov_b32 v20, 0\nv_mov_b32 v21, 0\ns_waitcnt vmcnt(0) lgkmcnt(0)")
    for f in range(32):
        a(f"v_lshlrev_b32 v10, 16, v{96+f}\nv_and_b32 v11, 0xffff0000, v{96+f}\nv_fmac_f32 v20, v10, v{128+f}\nv_fmac_f32 v21, v11, v{128+f}")
    a(f"""s_mul_i32 s14, s2, 1792
    v_cmp_gt_u32 vcc, 224, v0
    s_and_saveexec_b64 s[64:65], vcc
    s_cbranch_execz K6_S1
    buffer_store_dwordx2 v[20:21], v14, s[36:39], s14 offen sc1
    K6_S1:
    s_mov_b64 exec, s[64:65]
    s_waitcnt vmcnt(0)
    s_barrier
    v_cmp_eq_u32 vcc, 0, v0
    s_and_saveexec_b64 s[64:65], vcc
    s_cbranch_execz K6_S2
    v_mov_b32 v10, 1
    buffer_atomic_add v10, v0, s[40:43], 0 offen sc0
    s_waitcnt vmcnt(0)
    ds_write_b32 v0, v10
    K6_S2:
    s_mov_b64 exec, s[64:65]
    s_waitcnt lgkmcnt(0)
    s_barrier
    ds_read_b32 v10, v7
    s_waitcnt lgkmcnt(0)
    v_readfirstlane_b32 s14, v10
    s_nop 3
    s_cmp_lg_u32 s14, 55
    s_cbranch_scc1 K6_END
    v_cmp_gt_u32 vcc, 224, v0
    s_and_saveexec_b64 s[64:65], vcc
    s_cbranch_execz K6_END""")
    for b in range(56): a(f"s_mov_b32 s14, {b*1792}\nbuffer_load_dwordx2 v[{32+2*b}:{33+2*b}], v14, s[36:39], s14 offen sc1")
    a(f"""s_and_b32 s14, s60, 0xffff0000
    v_mov_b32 v18, s14
    v_ashrrev_i32 v19, 31, v18
    v_not_b32 v19, v19
    v_or_b32 v19, 0x80000000, v19
    v_xor_b32 v18, v18, v19
    v_and_b32 v18, 0xffff0000, v18""")
    silu_like(a,18,10,sig=True)
    a("s_waitcnt vmcnt(0)")
    for b in range(1,56): a(f"v_add_f32 v32, v32, v{32+2*b}\nv_add_f32 v33, v33, v{33+2*b}")
    a("v_lshlrev_b32 v10, 16, v13\nv_and_b32 v11, 0xffff0000, v13")
    for c in range(2):
        rnd(a,32+c); a(f"v_mul_f32 v{32+c}, v{32+c}, v18"); rnd(a,32+c)
        a(f"v_add_f32 v{32+c}, v{32+c}, v{8+c}"); rnd(a,32+c)
        a(f"v_mul_f32 v{32+c}, v{32+c}, v{16+c}"); rnd(a,32+c)
        a(f"v_add_f32 v{32+c}, v{32+c}, v{10+c}")
    a("v_cvt_pk_bf16_f32 v32, v32, v33\nbuffer_store_dword v32, v5, s[44:47], s62 offen\nK6_END:\ns_endpgm")
    return desc("k6_kernel",192,72,192)
```

```python
from common import *
import math
CSC = math.log2(math.e)/16.0
THR = 60.0
KP, VP = 1056, 1152
KT, VT = 16*KP, 16*VP
K1B, K0B = 96256, 130048
QB=128; SB=[64,96]; FR=32
def Q(qb,s): return f"v[{QB+qb*64+s*4}:{QB+qb*64+s*4+3}]"
def O(db,qb): b=(db*2+qb)*16; return f"a[{b}:{b+15}]"
def FRAG(f): b=FR+(f%8)*4; return b
VK,VVE,VVO,VDK,VDV,MC,L,TM,AL = 1,2,3,4,5,6,8,10,18
def frag_reads(kind, f, slot):
    b=FRAG(f)
    if kind=='K':
        return [f"ds_read_b128 v[{b}:{b+3}], v{VK} offset:{(33792 if slot==0 else 0)+f*32}"]
    db,s=f>>1,f&1
    va = VVE if db%2==0 else VVO
    return [f"ds_read_b64_tr_b16 v[{b+2*t}:{b+2*t+1}], v{va} offset:{slot*VT+(8*s+4*t)*VP+db*64}" for t in range(2)]
def dma(kind, slot, p):
    if kind=='K': return [f"s_add_u32 m0, s{24+slot}, {p*KP-(p&3)*1024}", "s_nop 0", f"buffer_load_dwordx4 v{VDK}, s[8:11], s{20+(p>>2)} offen offset:{(p&3)*1024} lds"]
    return [f"s_add_u32 m0, s{26+slot}, {p*VP-(p&3)*1024}", "s_nop 0", f"buffer_load_dwordx4 v{VDV}, s[12:15], s{22+(p>>2)} offen offset:{(p&3)*1024} lds"]
def adv(kind):
    b=20 if kind=='K' else 22
    return [f"s_add_u32 s{b}, s{b}, 16384", f"s_add_u32 s{b+1}, s{b+1}, 16384"]
def softmax(sb, init, uid):
    o=[]
    for qb in range(2):
        S=SB[sb]+16*qb; t=TM+4*qb
        o+= [f"v_max3_f32 v{t}, v{S}, v{S+1}, v{S+2}", f"v_max3_f32 v{t+1}, v{S+3}, v{S+4}, v{S+5}", f"v_max3_f32 v{t+2}, v{S+6}, v{S+7}, v{S+8}",
             f"v_max3_f32 v{t+3}, v{S+9}, v{S+10}, v{S+11}", f"v_max3_f32 v{t}, v{t}, v{S+12}, v{S+13}", f"v_max3_f32 v{t+1}, v{t+1}, v{S+14}, v{S+15}",
             f"v_max3_f32 v{t}, v{t}, v{t+2}, v{t+3}", f"v_max_f32 v{t}, v{t}, v{t+1}", f"v_mov_b32 v{t+1}, v{t}"]
    o+= ["s_nop 0", f"v_permlane32_swap_b32 v{TM}, v{TM+1}", f"v_permlane32_swap_b32 v{TM+4}, v{TM+5}", "s_nop 0",
         f"v_max_f32 v{TM}, v{TM}, v{TM+1}", f"v_max_f32 v{TM+4}, v{TM+4}, v{TM+5}"]
    if init:
        o+= [f"v_fma_f32 v{MC}, s28, v{TM}, v{AL}", f"v_fma_f32 v{MC+1}, s28, v{TM+4}, v{AL}", f"v_mov_b32 v{L}, 0", f"v_mov_b32 v{L+1}, 0"]
    else:
        o+= [f"v_fma_f32 v{TM+2}, v{TM}, s28, -v{MC}", f"v_fma_f32 v{TM+3}, v{TM+4}, s28, -v{MC+1}", f"v_max_f32 v{TM+2}, v{TM+2}, v{TM+3}",
             f"v_cmp_lt_f32 vcc, s29, v{TM+2}", "s_nop 1", f"s_cbranch_vccnz RB1_{uid}\nRB1R_{uid}:"]
    for qb in range(2):
        S=SB[sb]+16*qb
        for g in range(4):
            r=[S+4*g+i for i in range(4)]
            if not OPT.get('nornd'): o+= [f"v_cvt_pk_bf16_f32 v{x}, 0, v{x}" for x in r]
            o+= [f"v_fma_f32 v{x}, v{x}, s28, -v{MC+qb}" for x in r]
            o+= [f"v_exp_f32 v{x}, v{x}" for x in r]
            o+= [f"v_add_f32 v{L+qb}, v{L+qb}, v{x}" for x in r]
            o+= [f"v_cvt_pk_bf16_f32 v{S+2*g}, v{r[0]}, v{r[1]}", f"v_cvt_pk_bf16_f32 v{S+2*g+1}, v{r[2]}, v{r[3]}"]
    return [(x, 2 if x.startswith("v_exp") else 1) for x in o]
def rare_blocks(a, uid):
    a(f"RB1_{uid}:")
    for qb in range(2):
        t=TM+4*qb
        a(f"""v_mov_b32 v{t+2}, s57
        v_fmac_f32 v{t+2}, s28, v{t}
        v_max_f32 v{t+2}, v{t+2}, v{MC+qb}
        v_sub_f32 v{AL+qb}, v{MC+qb}, v{t+2}
        v_exp_f32 v{AL+qb}, v{AL+qb}
        v_mov_b32 v{MC+qb}, v{t+2}
        v_mul_f32 v{L+qb}, v{L+qb}, v{AL+qb}""")
    a(f"s_mov_b32 s30, 1\ns_branch RB1R_{uid}")
def rescale_block(a):
    a("RESC:\ns_nop 15\ns_nop 15")
    for db in range(8):
        for qb in range(2):
            b=(db*2+qb)*16
            for h in range(2):
                for i in range(8): a(f"v_accvgpr_read_b32 v{22+i}, a{b+8*h+i}")
                for i in range(8): a(f"v_mul_f32 v{22+i}, v{22+i}, v{AL+qb}")
                for i in range(8): a(f"v_accvgpr_write_b32 a{b+8*h+i}, v{22+i}")
    a("s_mov_b32 s30, 0\ns_nop 2\ns_setpc_b64 s[32:33]")
ISSUE={4:0,5:2,6:4,7:6,8:8,9:10,10:12,11:13,12:15,13:16,14:18,15:19}
NEXTG=[24,26,28,30]
class Sched:
    def __init__(s,a): s.a=a; s.q=[]
    def rd(s,lines,tag):
        if OPT.get('nolds'): return
        for x in lines: s.a(x); s.q.append(tag)
    def need(s,tag):
        if tag in s.q:
            i=max(k for k,t in enumerate(s.q) if t==tag)
            n=len(s.q)-1-i
            s.a(f"s_waitcnt lgkmcnt({n})"); s.q=s.q[i+1:]
def phase(sc, kind, slot, sb, nxt, dmas, fill, nfill, vm, resc_at_start=None, first_sm_gap=0):
    a=sc.a
    dg={}
    if dmas:
        gs=[1,3,5,7,9,11,14,17,20,21,22,23] if len(dmas)<=10 else list(range(1,24))
        step=len(gs)/len(dmas)
        for i,d in enumerate(dmas): dg.setdefault(gs[int(i*step)],[]).extend(d)
    for m in range(32):
        f=m>>1; qb=m&1; used=0
        if m==0 and resc_at_start is not None:
            a(f"s_cmp_eq_u32 s30, 0\ns_cbranch_scc1 NR_{resc_at_start}\ns_getpc_b64 s[32:33]\ns_add_u32 s32, s32, 12\ns_addc_u32 s33, s33, 0\ns_branch RESC\nNR_{resc_at_start}:")
        for ff,g in ISSUE.items():
            if g==m: r=frag_reads(kind,ff,slot); sc.rd(r,(kind,ff)); used+=len(r)
        if m==24 and nxt is not None:
            a(f"s_waitcnt vmcnt({vm}) lgkmcnt(0)\ns_barrier"); sc.q=[]; used+=2
        if nxt is not None and m in NEXTG:
            ff=NEXTG.index(m); r=frag_reads(nxt[0],ff,nxt[1]); sc.rd(r,(nxt[0]+'n',ff)); used+=len(r)
        if m in dg:
            for x in dg[m]: a(x)
            used+=len(dg[m])
        if m>=first_sm_gap:
            while fill and used+fill[0][1]<=nfill+ (1 if used==0 else 0):
                x,c=fill.pop(0); a(x); used+=c
        if qb==0: sc.need((kind,f))
        fr=FRAG(f)
        if kind=='K':
            S=SB[sb]+16*qb
            if OPT.get("m16"):
                for z in range(2):
                    zz=S+4*z+8*(f&1)
                    a(f"v_mfma_f32_16x16x32_bf16 v[{zz}:{zz+3}], v[{fr}:{fr+3}], {Q(qb,f)}, "+("0" if f<2 else f"v[{zz}:{zz+3}]"))
            else: a(f"v_mfma_f32_32x32x16_bf16 v[{S}:{S+15}], v[{fr}:{fr+3}], {Q(qb,f)}, "+("0" if f==0 else f"v[{S}:{S+15}]"))
        else:
            db,s=f>>1,f&1; P=SB[sb]+16*qb+4*s
            if OPT.get("m16"):
                for z in range(2):
                    zz=(db*2+qb)*16+4*z+8*s
                    a(f"v_mfma_f32_16x16x32_bf16 a[{zz}:{zz+3}], v[{fr}:{fr+3}], v[{P}:{P+3}], a[{zz}:{zz+3}]")
            else: a(f"v_mfma_f32_32x32x16_bf16 {O(db,qb)}, v[{fr}:{fr+3}], v[{P}:{P+3}], {O(db,qb)}")
    sc.q=[(t[0][0],t[1]) if t[0].endswith('n') else t for t in sc.q]
def flush(a,fill):
    print('flushed',len(fill))
    for x,c in fill: a(x)
    del fill[:]
OPT={}
class VM:
    def __init__(s,a): s.a=a; s.q=[]
    def add(s,tag,n=1): s.q+= [tag]*n
    def cnt(s,tag):
        i=max(k for k,t in enumerate(s.q) if t==tag); n=len(s.q)-1-i; s.q=s.q[i+1:]; return n
def k3(a, NF=5, **opt):
    OPT.clear(); OPT.update(opt)
    def stamp(i):
        if OPT.get("stamp"): a(f"s_memrealtime s[{60+2*i}:{61+2*i}]\ns_waitcnt lgkmcnt(0)")
    head(a,"k3_kernel")
    a(f"""s_cmp_ge_u32 s2, 256
    s_cbranch_scc1 K3_END
    s_load_dwordx4 s[4:7], s[0:1], 8
    s_load_dwordx2 s[34:35], s[0:1], 112
    v_lshrrev_b32 v20, 6, v0
    v_and_b32 v0, 63, v0
    v_readfirstlane_b32 s36, v20       ; wave
    s_and_b32 s37, s2, 7               ; kvh
    s_lshr_b32 s38, s2, 3
    s_and_b32 s40, s36, 1              ; hh
    s_lshr_b32 s41, s36, 1             ; khalf
    s_lshl_b32 s39, s37, 1
    s_add_u32 s39, s39, s40            ; head
    v_lshlrev_b32 v21, 4, v0           ; lane*16
    s_mul_i32 s42, s38, {2*28*1024}
    s_mul_i32 s43, s36, {14*1024}
    s_add_u32 s42, s42, s43
    s_waitcnt lgkmcnt(0)""")
    stamp(0)
    srd(a,16,34,2048*896,WS_HF); srd(a,44,34,448*8192,WS_WQF)
    vm=VM(a)
    for i in range(14):
        a(f"s_add_u32 m0, s43, {(i&~3)*1024}\ns_add_u32 s3, s42, {(i&~3)*1024}\nbuffer_load_dwordx4 v21, s[16:19], s3 offen offset:{(i&3)*1024} lds")
    vm.add('h',14)
    a(f"s_lshl_b32 s3, s39, 3\ns_lshl_b32 s42, s41, 2\ns_add_u32 s3, s3, s42\ns_mul_i32 s52, s3, {28*1024}")
    for dl in range(1,4): a(f"s_add_u32 s{52+dl}, s52, {dl*28*1024}")
    def wqr(ks,dl): return 32+((ks%14)*4+dl)*4
    def wq(ks):
        for dl in range(4):
            b=wqr(ks,dl)
            a(f"s_add_u32 s3, s{52+dl}, {(ks&~3)*1024}\nbuffer_load_dwordx4 v[{b}:{b+3}], v21, s[44:47], s3 offen offset:{(ks&3)*1024}")
        vm.add(('w',ks),4)
    for ks in range(8): wq(ks)
    srd(a,8,4,8<<20); srd(a,12,6,8<<20); srd(a,48,34,8*PART_SZ,WS_PART)
    a(f"""v_lshrrev_b32 v22, 5, v0
    v_xor_b32 v{VDK}, v0, v22
    v_lshlrev_b32 v{VDK}, 4, v{VDK}
    v_lshlrev_b32 v23, 2, v22
    v_xor_b32 v{VDV}, v0, v23
    v_lshlrev_b32 v{VDV}, 4, v{VDV}
    s_lshl_b32 s20, s37, 20
    s_lshl_b32 s3, s41, 19
    s_add_u32 s20, s20, s3
    s_lshl_b32 s3, s40, 13
    s_add_u32 s20, s20, s3
    s_add_u32 s21, s20, 4096
    s_mov_b32 s22, s20
    s_mov_b32 s23, s21
    s_mul_i32 s3, s41, {KT}
    s_mul_i32 s24, s40, {8*KP}
    s_add_u32 s24, s24, s3
    s_add_u32 s25, s24, {K1B}
    s_add_u32 s24, s24, {K0B}
    s_mul_i32 s3, s41, {2*VT}
    s_mul_i32 s26, s40, {8*VP}
    s_add_u32 s26, s26, s3
    s_add_u32 s27, s26, {VT}
    s_mov_b32 s28, {hex(f2u(CSC))}
    s_mov_b32 s29, {hex(f2u(THR-OPT.get("sh",0.0)))}
    s_mov_b32 s57, {hex(f2u(OPT.get("sh",0.0)))}
    v_mov_b32 v{AL}, s57
    s_mov_b32 s30, 0""")
    a(f"""v_and_b32 v24, 31, v0
    v_lshrrev_b32 v25, 1, v24
    v_mul_u32_u24 v{VK}, {KP}, v25
    v_and_b32 v25, 1, v24
    v_lshl_add_u32 v{VK}, v25, 9, v{VK}
    v_xor_b32 v25, v25, v22
    v_lshl_add_u32 v{VK}, v25, 4, v{VK}
    s_mul_i32 s3, s41, {KT}
    s_add_u32 s3, s3, {K1B}
    v_add_u32 v{VK}, s3, v{VK}
    v_bfe_u32 v24, v0, 3, 1            ; r>>1
    v_lshl_add_u32 v24, v22, 1, v24    ; 2h'+(r>>1)
    v_mul_u32_u24 v{VVE}, {VP}, v24
    v_bfe_u32 v24, v0, 2, 1            ; odd
    v_lshl_add_u32 v{VVE}, v24, 9, v{VVE}
    v_bfe_u32 v25, v0, 4, 1
    v_lshl_add_u32 v{VVE}, v25, 5, v{VVE}
    v_and_b32 v25, 3, v0
    v_lshl_add_u32 v{VVE}, v25, 3, v{VVE}
    s_mul_i32 s3, s41, {2*VT}
    v_add_u32 v{VVE}, s3, v{VVE}
    v_lshlrev_b32 v24, 6, v24
    v_sub_u32 v{VVO}, v{VVE}, v24
    v_add_u32 v{VVE}, v{VVE}, v24""")
    for i in range(160,256): a(f"v_accvgpr_write_b32 a{i}, 0")
    a(f"s_waitcnt vmcnt({vm.cnt('h')})\ns_barrier")
    stamp(1)
    def hrd(ks):
        for qb in range(2):
            b=128+((ks%4)*2+qb)*4
            a(f"ds_read_b128 a[{b}:{b+3}], v21 offset:{(qb*28+ks)*1024}")
    hrd(0); hrd(1)
    for ks in range(28):
        if ks+2<28: hrd(ks+2)
        if ks+8<28: wq(ks+8)
        if 6<=ks<22:
            for x in dma('K',(ks-6)>>3,(ks-6)&7): a(x)
            vm.add('K')
            if (ks-6)&7==7:
                for x in adv('K'): a(x)
        a(f"s_waitcnt vmcnt({vm.cnt(('w',ks))}) lgkmcnt({min(2,27-ks)*2})")
        for dl in range(4):
            for qb in range(2):
                c=(dl*2+qb)*16; b=wqr(ks,dl); hb=128+((ks%4)*2+qb)*4
                a(f"v_mfma_f32_32x32x16_bf16 a[{c}:{c+15}], v[{b}:{b+3}], a[{hb}:{hb+3}], "+("0" if ks==0 else f"a[{c}:{c+15}]"))
    stamp(2)
    a("s_barrier\ns_lshl_b32 s3, s40, 15\nv_add_u32 v25, s3, v21\ns_lshl_b32 s42, s41, 13\ns_add_u32 s3, s3, s42\nv_add_u32 v24, s3, v21\ns_nop 7")
    for dl in range(4):
        for qb in range(2):
            c=(dl*2+qb)*16; t=32+qb*24
            for i in range(16): a(f"v_accvgpr_read_b32 v{t+i}, a{c+i}")
            for i in range(8): a(f"v_cvt_pk_bf16_f32 v{t+16+i}, v{t+2*i}, v{t+2*i+1}")
            for h in range(2): a(f"ds_write_b128 v24, v[{t+16+4*h}:{t+19+4*h}] offset:{qb*16384+(2*dl+h)*1024}")
    a("s_waitcnt lgkmcnt(0)\ns_barrier")
    for s in range(16):
        for qb in range(2): a(f"ds_read_b128 {Q(qb,s)}, v25 offset:{qb*16384+s*1024}")
    for i in range(0,40): a(f"v_accvgpr_write_b32 a{i}, 0")
    a("s_waitcnt vmcnt(0) lgkmcnt(0)\ns_barrier")
    for p in range(8):
        for x in dma('V',0,p): a(x)
    for x in adv('V'): a(x)
    stamp(3)
    sc=Sched(a)
    for f in range(4): sc.rd(frag_reads('K',f,0),('K',f))
    D=lambda k,s:[dma(k,s,p) for p in range(8)]+[adv(k)]
    fill=[(f"v_accvgpr_write_b32 a{i}, 0",1) for i in range(40,160)]
    phase(sc,'K',0,0,('K',1),[],fill,NF,8); flush(a,fill)
    fill=softmax(0,True,"i0")
    phase(sc,'K',1,1,('V',0),D('K',0)+D('V',1),fill,7,16,first_sm_gap=3); flush(a,fill)
    if OPT.get("stamp"): a("s_memrealtime s[68:69]")
    a("s_mov_b32 s31, 15\ns_nop 1\nK3_LOOP:")
    st=list(sc.q)
    for par in (1,0):
        fill=softmax(par,False,f"l{par}")
        phase(sc,'V',1-par,1-par,('K',1-par),D('K',par),fill,NF,16,first_sm_gap=3)
        phase(sc,'K',1-par,1-par,('V',par),D('V',1-par),fill,NF,16,resc_at_start=f"l{par}"); flush(a,fill)
    assert st==sc.q,(st,sc.q)
    a("s_sub_u32 s31, s31, 1\ns_cmp_lg_u32 s31, 0\ns_cbranch_scc1 K3_LOOP")
    if OPT.get("stamp"): a("s_memrealtime s[70:71]")
    srd(a,44,34,4096*896,WS_WOF)
    a(f"""s_mul_i32 s56, s36, 3             ; nb0
    s_mul_i32 s52, s37, {32*14}
    s_add_u32 s53, s52, s41
    s_add_u32 s53, s53, 12
    s_lshl_b32 s53, s53, 10
    s_add_u32 s52, s52, s56
    s_lshl_b32 s52, s52, 10""")
    def wo(g):
        p,k=g>>5,g&31; b=128+(g%32)*4
        return [f"s_add_u32 s3, s{52 if p<3 else 53}, {k*14336+(p%3)*1024 if p<3 else k*14336}", f"buffer_load_dwordx4 v[{b}:{b+3}], v21, s[44:47], s3 offen"]
    fill=softmax(1,False,"t")
    phase(sc,'V',0,0,('V',1),[],fill,7,0,first_sm_gap=3); flush(a,fill)
    a("s_nop 1")
    phase(sc,'V',1,1,None,[wo(4*k)+wo(4*k+1)+wo(4*k+2)+wo(4*k+3) for k in range(7)],[],NF,0,resc_at_start="t")
    stamp(6)
    a(f"""v_mov_b32 v{TM}, v{L}
    v_mov_b32 v{TM+1}, v{L+1}
    s_lshl_b32 s3, s36, 10
    v_permlane32_swap_b32 v{L}, v{TM}
    v_permlane32_swap_b32 v{L+1}, v{TM+1}
    s_add_u32 s3, s3, 131072
    v_add_u32 v26, s3, v21
    v_add_f32 v{L}, v{L}, v{TM}
    v_add_f32 v{L+1}, v{L+1}, v{TM+1}
    s_xor_b32 s3, s3, 2048
    v_add_u32 v27, s3, v21
    ds_write_b128 v26, v[{MC}:{MC+3}]
    s_lshl_b32 s3, s36, 15
    v_add_u32 v24, s3, v21
    s_xor_b32 s3, s3, 65536
    v_add_u32 v25, s3, v21
    s_nop 7
    s_barrier
    s_cmp_eq_u32 s41, 0
    s_cbranch_scc0 EPI1""")
    for kh in range(2):
        if kh==1: a("EPI1:")
        for t in range(8):
            b=((4*(1-kh)+(t>>1))*2+(t&1))*16
            for i in range(4): a(f"ds_write_b128 v24, a[{b+4*i}:{b+4*i+3}] offset:{(t*4+i)*1024}")
        a("s_waitcnt lgkmcnt(0)\ns_barrier\nds_read_b128 v[12:15], v27")
        q=['m']
        def xr(t):
            for i in range(4): a(f"ds_read_b128 v[{64+(t%4)*16+4*i}:{67+(t%4)*16+4*i}], v25 offset:{(t*4+i)*1024}"); q.append(t)
        for t in range(3): xr(t)
        a("s_waitcnt lgkmcnt(12)"); del q[0]
        for qb in range(2):
            fo=28 if qb==0 else 16
            a(f"""v_max_f32 v10, v{MC+qb}, v{12+qb}
            v_sub_f32 v11, v{MC+qb}, v10
            v_sub_f32 v10, v{12+qb}, v10
            v_exp_f32 v11, v11
            v_exp_f32 v10, v10
            s_nop 0
            v_mul_f32 v{fo}, v10, v{14+qb}
            v_fma_f32 v{fo}, v11, v{L+qb}, v{fo}
            v_rcp_f32 v{fo+1}, v{fo}
            s_nop 0
            v_mul_f32 v{fo+2}, v10, v{fo+1}
            v_mul_f32 v{fo+3}, v10, v{fo+1}
            v_mul_f32 v{fo}, v11, v{fo+1}
            v_mul_f32 v{fo+1}, v11, v{fo+1}""")
        for t in range(8):
            b=((4*kh+(t>>1))*2+(t&1))*16; r=32+(t&1)*16; x=64+(t%4)*16; fo=28 if (t&1)==0 else 16
            if t+3<8: xr(t+3)
            for i in range(16): a(f"v_accvgpr_read_b32 v{r+i}, a{b+i}")
            for i in range(8): a(f"v_pk_mul_f32 v[{r+2*i}:{r+2*i+1}], v[{r+2*i}:{r+2*i+1}], v[{fo}:{fo+1}]")
            j=max(k for k,u in enumerate(q) if u==t); a(f"s_waitcnt lgkmcnt({min(15,len(q)-1-j)})"); del q[:j+1]
            for i in range(8): a(f"v_pk_fma_f32 v[{r+2*i}:{r+2*i+1}], v[{x+2*i}:{x+2*i+1}], v[{fo+2}:{fo+3}], v[{r+2*i}:{r+2*i+1}]")
            for i in range(8): a(f"v_cvt_pk_bf16_f32 v{x+i}, v{r+2*i}, v{r+2*i+1}")
            for h in range(2): a(f"ds_write_b128 v25, v[{x+4*h}:{x+4*h+3}] offset:{t*4096+h*1024}"); q.append('w')
        if kh==0: a("s_branch EPI2")
    a(f"""EPI2:
    v_add_u32 v26, 65536, v21
    s_lshl_b32 s3, s40, 12
    v_add_u32 v27, s3, v21
    v_add_u32 v28, s3, v26
    v_and_b32 v24, 31, v0
    v_lshlrev_b32 v24, 2, v24
    v_lshrrev_b32 v22, 5, v0
    v_mul_u32_u24 v22, {2*1792}, v22
    v_add_u32 v24, v22, v24
    s_mul_i32 s42, s37, {PART_SZ//2}
    s_mul_i32 s3, s38, {32*1792}
    s_add_u32 s42, s42, s3
    s_mul_i32 s3, s40, {16*1792}
    s_add_u32 s43, s42, s3
    s_lshl_b32 s3, s41, 7
    s_add_u32 s43, s43, s3
    s_add_u32 s43, s43, {12*128}
    s_lshl_b32 s3, s56, 7
    s_add_u32 s42, s42, s3
    s_waitcnt lgkmcnt(0)
    s_barrier""")
    stamp(8)
    vq=[('w',g) for g in range(28)]
    def yrd(g):
        p,k=g>>5,g&31
        hh,kh,dbl,s_=k>>4,(k>>3)&1,(k>>1)&3,k&1
        reg=(hh+2*kh)^2
        for qb in range(2 if p<3 else 1):
            off=reg*32768+(dbl*2+qb)*4096+s_*1024; b=32+((g%4)*2+qb)*4
            base=(21 if off<65536 else 26) if p<3 else (27 if off<65536 else 28)
            a(f"ds_read_b128 v[{b}:{b+3}], v{base} offset:{off%65536}")
    def stores(p):
        o=[]
        for qb in range(2 if p<3 else 1):
            for r in range(0,16,2):
                t=64+(len(o)%8)*2; c=(p*2+qb)*16+r
                o.append([f"v_accvgpr_read_b32 v{t}, a{c}", f"v_accvgpr_read_b32 v{t+1}, a{c+1}", f"s_add_u32 s3, s{42 if p<3 else 43}, {(16*qb+4*(r>>2)+((r&3)>>1))*1792+(p*128 if p<3 else 0)}",
                          f"v_cvt_pk_bf16_f32 v{t}, v{t}, v{t+1}", f"buffer_store_dword v{t}, v24, s[48:51], s3 offen"])
        return o
    yrd(0); yrd(1)
    pend=[]
    for g in range(128):
        p,k=g>>5,g&31
        if k==8 and p>0: pend=stores(p-1)
        if g+2<128: yrd(g+2)
        if g+28<128:
            for x in wo(g+28): a(x)
            vq.append(('w',g+28))
        for _ in range(1):
            if pend:
                for x in pend.pop(0): a(x)
                vq.append('s')
        j=vq.index(('w',g)); nv=len(vq)-1-j; del vq[:j+1]
        nl=sum((2 if ((g+d)>>5)<3 else 1) for d in (1,2) if g+d<128)
        a(f"s_waitcnt vmcnt({min(63,nv)}) lgkmcnt({nl})")
        for qb in range(2 if p<3 else 1):
            c=(p*2+qb)*16; b=128+(g%32)*4; yb=32+((g%4)*2+qb)*4
            a(f"v_mfma_f32_32x32x16_bf16 a[{c}:{c+15}], v[{yb}:{yb+3}], v[{b}:{b+3}], "+("0" if k==0 else f"a[{c}:{c+15}]"))
    stamp(9)
    a("s_nop 15")
    for x in stores(3):
        for y in x: a(y)
    if OPT.get("stamp"):
        a("s_waitcnt vmcnt(0)"); stamp(7)
        a("s_load_dwordx2 s[4:5], s[0:1], 104\ns_waitcnt lgkmcnt(0)"); srd(a,8,4,256)
        a(f"s_cmp_lg_u32 s2, 77\ns_cbranch_scc1 K3_END\ns_lshl_b32 s3, s36, 6")
        for i in range(10): a(f"s_sub_u32 s4, s{60+2*i}, s60\nv_mov_b32 v1, s4\nv_mov_b32 v2, 0\nbuffer_store_dword v1, v2, s[8:11], s3 offen offset:{4*i}")
    a("K3_END:\ns_endpgm")
    for u in ("l1","l0","t"): rare_blocks(a,u)
    rescale_block(a)
    return desc("k3_kernel",512,80,256)

def k4(a):
    head(a,"k4_kernel")
    a(f"""s_cmp_ge_u32 s2, 256
    s_cbranch_scc1 K4_END
    s_load_dwordx2 s[34:35], s[0:1], 112
    v_lshrrev_b32 v2, 6, v0
    v_and_b32 v0, 63, v0
    v_readfirstlane_b32 s36, v2
    s_and_b32 s37, s2, 1               ; nh
    s_bfe_u32 s38, s2, 0x20001         ; ksplit
    s_lshr_b32 s39, s2, 3              ; qt
    v_lshlrev_b32 v1, 4, v0
    s_waitcnt lgkmcnt(0)""")
    srd(a,8,34,2048*8192,WS_OF); srd(a,12,34,4096*896,WS_WOF); srd(a,16,34,4*PART_SZ,WS_PART)
    a(f"""s_lshl_b32 s40, s38, 6
    s_lshl_b32 s3, s36, 4
    s_add_u32 s40, s40, s3             ; kstep0
    s_lshl_b32 s20, s39, 9
    s_add_u32 s20, s20, s40
    s_lshl_b32 s20, s20, 10
    s_add_u32 s21, s20, 262144
    s_mul_i32 s22, s40, 14
    s_mul_i32 s3, s37, 7
    s_add_u32 s22, s22, s3
    s_lshl_b32 s22, s22, 10""")
    NS=6
    def ld(k):
        b=16+(k%NS)*36
        for qb in range(2): a(f"s_add_u32 s3, s{20+qb}, {(k&~3)*1024}\nbuffer_load_dwordx4 v[{b+4*qb}:{b+4*qb+3}], v1, s[8:11], s3 offen offset:{(k&3)*1024}")
        for n in range(7): a(f"s_add_u32 s3, s22, {k*14336+(n&~3)*1024}\nbuffer_load_dwordx4 v[{b+8+4*n}:{b+11+4*n}], v1, s[12:15], s3 offen offset:{(n&3)*1024}")
    for k in range(NS-1): ld(k)
    for k in range(16):
        if k+NS-1<16: ld(k+NS-1)
        a(f"s_waitcnt vmcnt({9*min(NS-1,15-k)})")
        b=16+(k%NS)*36
        for n in range(7):
            for qb in range(2):
                c=(n*2+qb)*16
                a(f"v_mfma_f32_32x32x16_bf16 a[{c}:{c+15}], v[{b+8+4*n}:{b+11+4*n}], v[{b+4*qb}:{b+4*qb+3}], "+("0" if k==0 else f"a[{c}:{c+15}]"))
    RS=912; WR=32*RS
    a(f"""v_and_b32 v2, 31, v0
    v_mul_u32_u24 v2, {RS}, v2
    v_lshrrev_b32 v3, 5, v0
    v_lshl_add_u32 v2, v3, 4, v2
    s_mul_i32 s3, s36, {WR}
    v_add_u32 v2, s3, v2
    s_lshl_b32 s41, s36, 3""")
    for i in range(7):
        a(f"""v_add_u32 v4, {i*64}, v0
        v_mul_u32_u24 v5, 1171, v4
        v_lshrrev_b32 v5, 16, v5
        v_mul_u32_u24 v6, 56, v5
        v_sub_u32 v6, v4, v6
        v_add_u32 v5, s41, v5
        v_mul_u32_u24 v{16+i}, {RS}, v5
        v_lshl_add_u32 v{16+i}, v6, 4, v{16+i}
        v_add_u32 v{32+i}, {2*WR}, v{16+i}
        v_mul_u32_u24 v{24+i}, 1792, v5
        v_lshl_add_u32 v{24+i}, v6, 4, v{24+i}""")
    a(f"""s_mul_i32 s42, s38, {PART_SZ}
    s_mul_i32 s3, s39, {64*1792}
    s_add_u32 s42, s42, s3
    s_mul_i32 s3, s37, 896
    s_add_u32 s42, s42, s3
    s_nop 7""")
    for t in range(2):
        if t: a("s_barrier")
        for n in range(7):
            for q in range(4):
                c=(n*2+t)*16+4*q
                a(f"ds_write_b128 v2, a[{c}:{c+3}] offset:{n*128+q*32}")
        a("s_waitcnt lgkmcnt(0)\ns_barrier")
        for i in range(7):
            for s in range(4):
                b=48+(i*4+s)*4
                a(f"ds_read_b128 v[{b}:{b+3}], v{(16 if s<2 else 32)+i} offset:{(s&1)*WR}")
        a(f"s_add_u32 s3, s42, {t*32*1792}")
        for i in range(7):
            b=48+i*16
            a(f"s_waitcnt lgkmcnt({min(15,(6-i)*4)})")
            for c in range(4): a(f"v_add_f32 v{b+c}, v{b+c}, v{b+4+c}\nv_add_f32 v{b+8+c}, v{b+8+c}, v{b+12+c}\nv_add_f32 v{b+c}, v{b+c}, v{b+8+c}")
            a(f"buffer_store_dwordx4 v[{b}:{b+3}], v{24+i}, s[16:19], s3 offen")
    a("K4_END:\ns_endpgm")
    return desc("k4_kernel",480,48,256)
```

```python
from common import *
LOG2E=1.4426950408889634
def k1(a):
    head(a,"k1_kernel")
    a("s_cmp_ge_u32 s2, 564\ns_cbranch_scc1 K1_END")
    a("s_load_dwordx4 s[4:7], s[0:1], 24\ns_load_dwordx4 s[8:11], s[0:1], 80\ns_load_dwordx4 s[36:39], s[0:1], 104\ns_waitcnt lgkmcnt(0)\ns_mov_b32 s12, s38\ns_mov_b32 s13, s39")
    a("s_mov_b32 s30, 0x05040100\ns_mov_b32 s31, 0x07060302")
    a("s_cmp_ge_u32 s2, 84\ns_cbranch_scc1 K1_W")
    srd(a,16,8,896); srd(a,20,10,448*5376); srd(a,24,12,2688*4,WS_MOD); srd(a,40,36,256)
    a(f"""v_lshlrev_b32 v1, 1, v0
    buffer_load_ushort v2, v1, s[16:19], 0 offen
    buffer_load_ushort v3, v1, s[16:19], 0 offen offset:512
    v_and_b32 v4, 15, v0
    v_lshrrev_b32 v5, 4, v0
    v_mul_u32_u24 v6, {28*5376}, v5
    v_lshl_add_u32 v6, v4, 2, v6
    s_lshl_b32 s3, s2, 6""")
    for i in range(28):
        a(f"s_add_u32 s14, s3, {i*5376}\nbuffer_load_dword v{16+i}, v6, s[20:23], s14 offen")
    a("s_waitcnt vmcnt(28)")
    for r in (2,3):
        a(f"""v_lshlrev_b32 v{r}, 16, v{r}
        v_mul_f32 v7, {hex(f2u(-LOG2E))}, v{r}
        v_exp_f32 v7, v7
        s_nop 0
        v_add_f32 v7, 1.0, v7
        v_rcp_f32 v7, v7
        s_nop 0
        v_mul_f32 v{r}, v{r}, v7""")
        rnd(a,r)
    a(f"""v_lshlrev_b32 v7, 2, v0
    ds_write_b32 v7, v2
    ds_write_b32 v7, v3 offset:1024
    s_waitcnt lgkmcnt(0)
    s_barrier
    v_mul_u32_u24 v7, 112, v5""")
    for i in range(7): a(f"ds_read_b128 v[{44+4*i}:{47+4*i}], v7 offset:{16*i}")
    a("v_mov_b32 v8, 0\nv_mov_b32 v9, 0\ns_waitcnt vmcnt(0) lgkmcnt(0)")
    for i in range(28):
        a(f"v_lshlrev_b32 v10, 16, v{16+i}\nv_and_b32 v11, 0xffff0000, v{16+i}\nv_fmac_f32 v8, v10, v{44+i}\nv_fmac_f32 v9, v11, v{44+i}")
    a(f"""v_lshlrev_b32 v7, 3, v0
    ds_write_b64 v7, v[8:9] offset:4096
    s_waitcnt lgkmcnt(0)
    s_barrier
    v_cmp_gt_u32 vcc, 32, v0
    s_and_saveexec_b64 s[14:15], vcc
    s_cbranch_execz K1_END
    v_lshlrev_b32 v7, 2, v0""")
    for g in range(16): a(f"ds_read_b32 v{16+g}, v7 offset:{4096+128*g}")
    a("s_waitcnt lgkmcnt(0)")
    for g in range(1,16): a(f"v_add_f32 v16, v16, v{16+g}")
    rnd(a,16)
    a("""s_lshl_b32 s3, s2, 7
    buffer_store_dword v16, v7, s[24:27], s3 offen
    s_endpgm""")
    a("K1_W:\ns_cmp_ge_u32 s2, 308\ns_cbranch_scc1 K1_WO")
    srd(a,16,4,448*8192); srd(a,20,12,448*8192,WS_WQF)
    a(f"""v_lshrrev_b32 v1, 6, v0
    s_sub_u32 s3, s2, 84
    s_nop 0
    v_readfirstlane_b32 s14, v1
    s_lshl_b32 s3, s3, 2
    s_add_u32 s3, s3, s14
    s_and_b32 s14, s3, 1           ; hh
    s_lshr_b32 s15, s3, 1
    s_mul_hi_u32 s28, s15, {(2**32+27)//28}   ; head
    s_mul_i32 s29, s28, 28
    s_sub_u32 s29, s15, s29        ; ks
    s_lshl_b32 s32, s29, 1
    s_add_u32 s32, s32, s14
    s_lshl_b32 s32, s32, 16        ; (16ks+8hh)*8192
    s_lshl_b32 s33, s28, 9
    s_add_u32 s32, s32, s33        ; + head*512
    v_and_b32 v2, 63, v0
    v_lshlrev_b32 v3, 3, v2""")
    for e in range(8): a(f"s_add_u32 s33, s32, {e*8192}\nbuffer_load_dwordx2 v[{16+2*e}:{17+2*e}], v3, s[16:19], s33 offen")
    a(f"""v_lshrrev_b32 v4, 3, v2
    v_lshlrev_b32 v4, 11, v4
    v_and_b32 v5, 4, v2
    v_lshl_add_u32 v4, v5, 6, v4
    v_and_b32 v5, 1, v2
    v_lshl_add_u32 v4, v5, 7, v4
    v_and_b32 v5, 2, v2
    v_lshl_add_u32 v4, v5, 5, v4
    s_and_b32 s34, s3, 3
    s_lshl_b32 s34, s34, 9
    v_add_u32 v4, s34, v4
    s_mul_i32 s33, s28, {8*28*1024}
    s_and_b32 s34, s29, 30
    s_lshl_b32 s34, s34, 10
    s_add_u32 s33, s33, s34
    v_lshrrev_b32 v6, 7, v0
    v_mul_u32_u24 v6, {28*1024}, v6
    v_and_b32 v5, 127, v0
    v_lshl_add_u32 v6, v5, 4, v6
    s_mov_b32 s35, {2*28*1024}
    s_branch K1_TR""")
    a("K1_WO:")
    srd(a,16,6,4096*896); srd(a,20,12,4096*896,WS_WOF)
    a(f"""s_sub_u32 s3, s2, 308
    v_cmp_le_u32 vcc, 112, v0
    v_mov_b32 v5, 0
    s_nop 0
    v_cndmask_b32 v1, v5, 1, vcc   ; h'
    v_mul_u32_u24 v2, 112, v1
    v_sub_u32 v2, v0, v2           ; g
    v_mul_u32_u24 v3, {4*896}, v1
    v_lshl_add_u32 v3, v2, 3, v3
    s_mul_i32 s32, s3, {16*896}""")
    for e in range(8): a(f"s_add_u32 s33, s32, {(8*(e>>2)+(e&3))*896}\nbuffer_load_dwordx2 v[{16+2*e}:{17+2*e}], v3, s[16:19], s33 offen")
    a(f"""v_lshrrev_b32 v4, 3, v2
    v_lshlrev_b32 v4, 10, v4
    v_lshl_add_u32 v4, v1, 9, v4
    v_and_b32 v5, 7, v2
    v_lshl_add_u32 v4, v5, 6, v4
    s_mul_i32 s33, s3, {14*1024}
    v_lshlrev_b32 v6, 4, v0
    s_mov_b32 s35, 4096
    v_cmp_gt_u32 vcc, 224, v0
    v_mov_b32 v5, 16384
    s_nop 0
    v_cndmask_b32 v4, v5, v4, vcc
    s_add_u32 s22, s33, {14*1024}""")
    a("K1_TR:\ns_waitcnt vmcnt(0)")
    for b in range(4):
        for p in range(4):
            a(f"v_perm_b32 v{32+4*b+p}, v{16+4*p+2+(b>>1)}, v{16+4*p+(b>>1)}, s{30+(b&1)}")
    for b in range(4): a(f"ds_write_b128 v4, v[{32+4*b}:{35+4*b}] offset:{16*b}")
    a("v_lshlrev_b32 v7, 4, v0\ns_waitcnt lgkmcnt(0)\ns_barrier")
    for j in range(4): a(f"ds_read_b128 v[{32+4*j}:{35+4*j}], v7 offset:{4096*j}")
    for j in range(4):
        a(f"s_waitcnt lgkmcnt({3-j})\nbuffer_store_dwordx4 v[{32+4*j}:{35+4*j}], v6, s[20:23], s33 offen\ns_add_u32 s33, s33, s35")
    a("K1_END:\ns_endpgm")
    return desc("k1_kernel",80,48,80)

def rowsetup(a, nwg, end):
    a(f"""s_cmp_ge_u32 s2, {nwg}
    s_cbranch_scc1 {end}
    v_lshrrev_b32 v1, 6, v0
    s_nop 0
    v_readfirstlane_b32 s3, v1
    s_lshl_b32 s4, s2, 2
    s_add_u32 s3, s3, s4
    v_and_b32 v1, 63, v0
    v_cmp_gt_u32 vcc, 56, v1
    v_mov_b32 v2, 0
    s_nop 0
    v_cndmask_b32 v2, v2, 1.0, vcc""")
def k2(a):
    head(a,"k2_kernel")
    rowsetup(a,512,"K2_END")
    a("s_load_dwordx2 s[4:5], s[0:1], 0\ns_load_dwordx4 s[36:39], s[0:1], 104\ns_waitcnt lgkmcnt(0)")
    srd(a,16,4,2048*896); srd(a,20,38,2688*4,WS_MOD); srd(a,24,38,2048*896,WS_HF); srd(a,40,36,256)
    a(f"""v_lshlrev_b32 v3, 4, v1
    s_mul_i32 s6, s3, 896
    buffer_load_dwordx4 v[4:7], v3, s[16:19], s6 offen
    v_lshlrev_b32 v8, 5, v1
    buffer_load_dwordx4 v[40:43], v8, s[20:23], 0 offen
    buffer_load_dwordx4 v[44:47], v8, s[20:23], 0 offen offset:16
    buffer_load_dwordx4 v[48:51], v8, s[20:23], 0 offen offset:1792
    buffer_load_dwordx4 v[52:55], v8, s[20:23], 0 offen offset:1808
    s_waitcnt vmcnt(4)""")
    unpack8(a,16,4)
    layernorm(a,16,24,32,2)
    a("s_waitcnt vmcnt(0)")
    for i in range(8):
        a(f"v_add_f32 v{48+i}, 1.0, v{48+i}"); rnd(a,48+i)
        a(f"v_mul_f32 v{24+i}, v{24+i}, v{48+i}"); rnd(a,24+i)
        a(f"v_add_f32 v{24+i}, v{24+i}, v{40+i}")
    pack8(a,4,24)
    a(f"""s_lshr_b32 s6, s3, 5
    s_mul_i32 s6, s6, {28*1024}
    s_and_b32 s7, s3, 31
    s_lshl_b32 s7, s7, 4
    s_add_u32 s6, s6, s7
    v_lshlrev_b32 v3, 9, v1
    v_cmp_gt_u32 vcc, 56, v1
    s_and_saveexec_b64 s[14:15], vcc
    buffer_store_dwordx4 v[4:7], v3, s[24:27], s6 offen
    K2_END:
    s_endpgm""")
    return desc("k2_kernel",64,48,64)

def k5(a):
    head(a,"k5_kernel")
    rowsetup(a,512,"K5_END")
    a("s_load_dwordx2 s[4:5], s[0:1], 0\ns_load_dwordx2 s[8:9], s[0:1], 48\ns_load_dwordx2 s[10:11], s[0:1], 96\ns_load_dwordx2 s[12:13], s[0:1], 112\ns_waitcnt lgkmcnt(0)")
    srd(a,16,4,2048*896); srd(a,20,12,2688*4,WS_MOD); srd(a,24,12,4*PART_SZ,WS_PART); srd(a,28,8,896)
    srd(a,32,10,2048*896); srd(a,36,12,2048*896,WS_X1); srd(a,40,12,2048*896,WS_H2); srd(a,44,12,8192,WS_R)
    a(f"v_lshlrev_b32 v3, 4, v1\nv_lshlrev_b32 v8, 5, v1\ns_lshr_b32 s6, s3, 1\ns_mul_i32 s15, s6, 1792\ns_mul_i32 s6, s3, 896\ns_and_b32 s7, s3, 1\ns_mul_i32 s7, s7, 0x02020000\ns_add_u32 s52, s7, 0x01000c0c")
    for p in range(8):
        b=128+8*p
        a(f"s_add_u32 s14, s15, {p*PART_SZ//2}\nbuffer_load_dwordx4 v[{b}:{b+3}], v8, s[24:27], s14 offen\nbuffer_load_dwordx4 v[{b+4}:{b+7}], v8, s[24:27], s14 offen offset:16")
    a("buffer_load_dwordx4 v[4:7], v3, s[16:19], s6 offen\nbuffer_load_dwordx4 v[12:15], v3, s[28:31], 0 offen")
    for m in range(2,6):
        a(f"s_mov_b32 s14, {m*1792}\nbuffer_load_dwordx4 v[{96+8*(m-2)}:{99+8*(m-2)}], v8, s[20:23], s14 offen\nbuffer_load_dwordx4 v[{100+8*(m-2)}:{103+8*(m-2)}], v8, s[20:23], s14 offen offset:16")
    for p in range(8):
        a(f"s_waitcnt vmcnt({24-2*p})")
        for i in range(8):
            x=128+8*p+i
            if p==0: a(f"v_perm_b32 v{64+i}, v{x}, v{x}, s52")
            else: a(f"v_perm_b32 v{x}, v{x}, v{x}, s52\nv_add_f32 v{64+i}, v{64+i}, v{x}")
    a("s_waitcnt vmcnt(0)")
    unpack8(a,40,12)
    for i in range(8): a(f"v_add_f32 v{112+i}, 1.0, v{112+i}"); rnd(a,112+i)
    a("v_cmp_gt_u32 s[48:49], 56, v1\nv_cmp_eq_u32 s[50:51], 0, v1")
    for rr in range(1):
        P=64+8*rr
        unpack8(a,16,4 if rr==0 else 48)
        for i in range(8):
            rnd(a,P+i)
            a(f"v_mul_f32 v{P+i}, v{P+i}, v{96+i}"); rnd(a,P+i)
            a(f"v_add_f32 v{16+i}, v{16+i}, v{P+i}"); rnd(a,16+i)
        layernorm(a,16,24,32,2)
        a("v_mov_b32 v36, 0")
        for i in range(8):
            a(f"v_mul_f32 v{24+i}, v{24+i}, v{112+i}"); rnd(a,24+i)
            a(f"v_add_f32 v{24+i}, v{24+i}, v{104+i}"); rnd(a,24+i)
            a(f"v_fmac_f32 v36, v{24+i}, v{40+i}")
            a(f"v_mul_f32 v{P+i}, v{24+i}, v{120+i}"); rnd(a,P+i)
            a(f"v_add_f32 v{P+i}, v{P+i}, v{16+i}")
        a("v_mul_f32 v36, v36, v2")
        wave_red(a,36,37)
        o=128+16*rr
        pack8(a,o,P); pack8(a,o+4,16); pack8(a,o+8,24)
        rnd(a,36)
        a(f"""v_ashrrev_i32 v37, 31, v36
        v_or_b32 v37, 0x80000000, v37
        v_xor_b32 v36, v36, v37
        v_and_b32 v36, 0xffff0000, v36
        s_sub_u32 s7, 2047, s3
        v_or_b32 v{o+12}, s7, v36
        s_mov_b64 exec, s[48:49]
        buffer_store_dwordx4 v[{o}:{o+3}], v3, s[32:35], s6 offen offset:{896*rr}
        buffer_store_dwordx4 v[{o+4}:{o+7}], v3, s[36:39], s6 offen offset:{896*rr}
        buffer_store_dwordx4 v[{o+8}:{o+11}], v3, s[40:43], s6 offen offset:{896*rr}
        s_mov_b64 exec, s[50:51]
        s_lshl_b32 s7, s3, 2
        buffer_store_dword v{o+12}, v1, s[44:47], s7 offen offset:{4*rr}
        s_mov_b64 exec, -1""")
    a("K5_END:\ns_endpgm")
    return desc("k5_kernel",192,56,192)

def silu_like(a, v, t, sig=False):
    a(f"v_mul_f32 v{t}, {hex(f2u(-LOG2E))}, v{v}\nv_exp_f32 v{t}, v{t}\ns_nop 0\nv_add_f32 v{t}, 1.0, v{t}\nv_rcp_f32 v{t}, v{t}\ns_nop 0")
    if sig: a(f"v_mov_b32 v{v}, v{t}")
    else: a(f"v_mul_f32 v{v}, v{v}, v{t}")
    rnd(a,v)
def k6(a):
    head(a,"k6_kernel")
    a("s_cmp_ge_u32 s2, 56\ns_cbranch_scc1 K6_END")
    a("s_load_dwordx4 s[4:7], s[0:1], 56\ns_load_dwordx2 s[8:9], s[0:1], 72\ns_load_dwordx4 s[48:51], s[0:1], 96\ns_load_dwordx2 s[12:13], s[0:1], 112\ns_waitcnt lgkmcnt(0)")
    srd(a,16,4,448*3584); srd(a,20,6,448*3584); srd(a,24,8,1792*896); srd(a,28,12,8192,WS_R)
    srd(a,32,12,2048*896,WS_H2); srd(a,36,12,56*1792,WS_YP); srd(a,40,50,256); srd(a,44,48,2048*896)
    srd(a,52,12,2048*896,WS_X1); srd(a,56,12,2688*4,WS_MOD)
    a(f"""v_lshlrev_b32 v1, 5, v0
    buffer_load_dwordx4 v[4:7], v1, s[28:31], 0 offen
    buffer_load_dwordx4 v[8:11], v1, s[28:31], 0 offen offset:16
    v_and_b32 v2, 15, v0
    v_lshrrev_b32 v3, 4, v0
    v_mul_u32_u24 v12, {28*3584}, v3
    v_lshl_add_u32 v12, v2, 2, v12
    s_lshl_b32 s3, s2, 6""")
    for i in range(28):
        a(f"s_add_u32 s14, s3, {i*3584}\nbuffer_load_dword v{32+i}, v12, s[16:19], s14 offen\nbuffer_load_dword v{64+i}, v12, s[20:23], s14 offen")
    a(f"""s_waitcnt vmcnt(56)
    v_max3_u32 v4, v4, v5, v6
    v_max3_u32 v4, v4, v7, v8
    v_max3_u32 v4, v4, v9, v10
    v_max_u32 v4, v4, v11""")
    wave_red(a,4,5,"v_max_u32")
    a(f"""v_lshrrev_b32 v5, 6, v0
    v_lshlrev_b32 v5, 2, v5
    ds_write_b32 v5, v4
    s_waitcnt lgkmcnt(0)
    s_barrier
    v_mov_b32 v5, 0
    ds_read_b128 v[4:7], v5
    s_waitcnt lgkmcnt(0)
    v_max3_u32 v4, v4, v5, v6
    v_max_u32 v4, v4, v7
    s_nop 0
    v_readfirstlane_b32 s60, v4       ; key
    s_nop 3
    s_and_b32 s61, s60, 0xffff
    s_sub_u32 s61, 2047, s61          ; idx
    s_mul_i32 s62, s61, 896
    v_lshlrev_b32 v5, 2, v0
    buffer_load_dword v6, v5, s[32:35], s62 offen
    buffer_load_dword v13, v5, s[52:55], s62 offen    ; x1 pair
    v_lshlrev_b32 v14, 3, v0
    s_mov_b32 s14, {5*1792}
    buffer_load_dwordx2 v[16:17], v14, s[56:59], s14 offen
    s_mul_i32 s15, s2, {32*896}""")
    for f in range(32): a(f"s_add_u32 s14, s15, {f*896}\nbuffer_load_dword v{96+f}, v5, s[24:27], s14 offen")
    a(f"""s_waitcnt vmcnt(34)
    v_lshlrev_b32 v8, 16, v6
    v_and_b32 v9, 0xffff0000, v6
    ds_write_b64 v14, v[8:9] offset:64
    s_waitcnt lgkmcnt(0)
    s_barrier
    v_mul_u32_u24 v7, 112, v3""")
    for i in range(7): a(f"ds_read_b128 v[{128+4*i}:{131+4*i}], v7 offset:{64+16*i}")
    a("v_mov_b32 v20, 0\nv_mov_b32 v21, 0\nv_mov_b32 v22, 0\nv_mov_b32 v23, 0\ns_waitcnt lgkmcnt(0)")
    for i in range(28):
        a(f"v_lshlrev_b32 v10, 16, v{32+i}\nv_and_b32 v11, 0xffff0000, v{32+i}\nv_fmac_f32 v20, v10, v{128+i}\nv_fmac_f32 v21, v11, v{128+i}")
        a(f"v_lshlrev_b32 v10, 16, v{64+i}\nv_and_b32 v11, 0xffff0000, v{64+i}\nv_fmac_f32 v22, v10, v{128+i}\nv_fmac_f32 v23, v11, v{128+i}")
    a(f"""v_lshlrev_b32 v7, 4, v0
    ds_write_b128 v7, v[20:23] offset:4096
    s_waitcnt lgkmcnt(0)
    s_barrier
    v_lshlrev_b32 v7, 4, v2""")
    for g in range(16): a(f"ds_read_b128 v[{128+4*g}:{131+4*g}], v7 offset:{4096+256*g}")
    a("s_waitcnt lgkmcnt(0)")
    for g in range(1,16):
        for c in range(4): a(f"v_add_f32 v{128+c}, v{128+c}, v{128+4*g+c}")
    for c in range(4): rnd(a,128+c)
    silu_like(a,128,10); silu_like(a,129,10)
    a("v_mul_f32 v128, v128, v130\nv_mul_f32 v129, v129, v131"); rnd(a,128); rnd(a,129)
    a(f"""v_lshlrev_b32 v7, 3, v2
    s_barrier
    ds_write_b64 v7, v[128:129] offset:8192
    s_waitcnt lgkmcnt(0)
    s_barrier
    v_mov_b32 v7, 0""")
    for i in range(8): a(f"ds_read_b128 v[{128+4*i}:{131+4*i}], v7 offset:{8192+16*i}")
    a("v_mov_b32 v20, 0\nv_mov_b32 v21, 0\ns_waitcnt vmcnt(0) lgkmcnt(0)")
    for f in range(32):
        a(f"v_lshlrev_b32 v10, 16, v{96+f}\nv_and_b32 v11, 0xffff0000, v{96+f}\nv_fmac_f32 v20, v10, v{128+f}\nv_fmac_f32 v21, v11, v{128+f}")
    a(f"""s_mul_i32 s14, s2, 1792
    v_cmp_gt_u32 vcc, 224, v0
    s_and_saveexec_b64 s[64:65], vcc
    s_cbranch_execz K6_S1
    buffer_store_dwordx2 v[20:21], v14, s[36:39], s14 offen sc1
    K6_S1:
    s_mov_b64 exec, s[64:65]
    s_waitcnt vmcnt(0)
    s_barrier
    v_cmp_eq_u32 vcc, 0, v0
    s_and_saveexec_b64 s[64:65], vcc
    s_cbranch_execz K6_S2
    v_mov_b32 v10, 1
    buffer_atomic_add v10, v0, s[40:43], 0 offen sc0
    s_waitcnt vmcnt(0)
    ds_write_b32 v0, v10
    K6_S2:
    s_mov_b64 exec, s[64:65]
    s_waitcnt lgkmcnt(0)
    s_barrier
    ds_read_b32 v10, v7
    s_waitcnt lgkmcnt(0)
    v_readfirstlane_b32 s14, v10
    s_nop 3
    s_cmp_lg_u32 s14, 55
    s_cbranch_scc1 K6_END
    v_cmp_gt_u32 vcc, 224, v0
    s_and_saveexec_b64 s[64:65], vcc
    s_cbranch_execz K6_END""")
    for b in range(56): a(f"s_mov_b32 s14, {b*1792}\nbuffer_load_dwordx2 v[{32+2*b}:{33+2*b}], v14, s[36:39], s14 offen sc1")
    a(f"""s_and_b32 s14, s60, 0xffff0000
    v_mov_b32 v18, s14
    v_ashrrev_i32 v19, 31, v18
    v_not_b32 v19, v19
    v_or_b32 v19, 0x80000000, v19
    v_xor_b32 v18, v18, v19
    v_and_b32 v18, 0xffff0000, v18""")
    silu_like(a,18,10,sig=True)
    a("s_waitcnt vmcnt(0)")
    for b in range(1,56): a(f"v_add_f32 v32, v32, v{32+2*b}\nv_add_f32 v33, v33, v{33+2*b}")
    a("v_lshlrev_b32 v10, 16, v13\nv_and_b32 v11, 0xffff0000, v13")
    for c in range(2):
        rnd(a,32+c); a(f"v_mul_f32 v{32+c}, v{32+c}, v18"); rnd(a,32+c)
        a(f"v_add_f32 v{32+c}, v{32+c}, v{8+c}"); rnd(a,32+c)
        a(f"v_mul_f32 v{32+c}, v{32+c}, v{16+c}"); rnd(a,32+c)
        a(f"v_add_f32 v{32+c}, v{32+c}, v{10+c}")
    a("v_cvt_pk_bf16_f32 v32, v32, v33\nbuffer_store_dword v32, v5, s[44:47], s62 offen\nK6_END:\ns_endpgm")
    return desc("k6_kernel",192,72,192)
```

```python
from common import *
import math
CSC = math.log2(math.e)/16.0
THR = 60.0
KP, VP = 1056, 1152
KT, VT = 16*KP, 16*VP
K1B, K0B = 96256, 130048
QB=128; SB=[64,96]; FR=32
def Q(qb,s): return f"v[{QB+qb*64+s*4}:{QB+qb*64+s*4+3}]"
def O(db,qb): b=(db*2+qb)*16; return f"a[{b}:{b+15}]"
def FRAG(f): b=FR+(f%8)*4; return b
VK,VVE,VVO,VDK,VDV,MC,L,TM,AL = 1,2,3,4,5,6,8,10,18
def frag_reads(kind, f, slot):
    b=FRAG(f)
    if kind=='K':
        return [f"ds_read_b128 v[{b}:{b+3}], v{VK} offset:{(33792 if slot==0 else 0)+f*32}"]
    db,s=f>>1,f&1
    va = VVE if db%2==0 else VVO
    return [f"ds_read_b64_tr_b16 v[{b+2*t}:{b+2*t+1}], v{va} offset:{slot*VT+(8*s+4*t)*VP+db*64}" for t in range(2)]
def dma(kind, slot, p):
    if kind=='K': return [f"s_add_u32 m0, s{24+slot}, {p*KP-(p&3)*1024}", "s_nop 0", f"buffer_load_dwordx4 v{VDK}, s[8:11], s{20+(p>>2)} offen offset:{(p&3)*1024} lds"]
    return [f"s_add_u32 m0, s{26+slot}, {p*VP-(p&3)*1024}", "s_nop 0", f"buffer_load_dwordx4 v{VDV}, s[12:15], s{22+(p>>2)} offen offset:{(p&3)*1024} lds"]
def adv(kind):
    b=20 if kind=='K' else 22
    return [f"s_add_u32 s{b}, s{b}, 16384", f"s_add_u32 s{b+1}, s{b+1}, 16384"]
def softmax(sb, init, uid):
    o=[]
    for qb in range(2):
        S=SB[sb]+16*qb; t=TM+4*qb
        o+= [f"v_max3_f32 v{t}, v{S}, v{S+1}, v{S+2}", f"v_max3_f32 v{t+1}, v{S+3}, v{S+4}, v{S+5}", f"v_max3_f32 v{t+2}, v{S+6}, v{S+7}, v{S+8}",
             f"v_max3_f32 v{t+3}, v{S+9}, v{S+10}, v{S+11}", f"v_max3_f32 v{t}, v{t}, v{S+12}, v{S+13}", f"v_max3_f32 v{t+1}, v{t+1}, v{S+14}, v{S+15}",
             f"v_max3_f32 v{t}, v{t}, v{t+2}, v{t+3}", f"v_max_f32 v{t}, v{t}, v{t+1}", f"v_mov_b32 v{t+1}, v{t}"]
    o+= ["s_nop 0", f"v_permlane32_swap_b32 v{TM}, v{TM+1}", f"v_permlane32_swap_b32 v{TM+4}, v{TM+5}", "s_nop 0",
         f"v_max_f32 v{TM}, v{TM}, v{TM+1}", f"v_max_f32 v{TM+4}, v{TM+4}, v{TM+5}"]
    if init:
        o+= [f"v_fma_f32 v{MC}, s28, v{TM}, v{AL}", f"v_fma_f32 v{MC+1}, s28, v{TM+4}, v{AL}", f"v_mov_b32 v{L}, 0", f"v_mov_b32 v{L+1}, 0"]
    else:
        o+= [f"v_fma_f32 v{TM+2}, v{TM}, s28, -v{MC}", f"v_fma_f32 v{TM+3}, v{TM+4}, s28, -v{MC+1}", f"v_max_f32 v{TM+2}, v{TM+2}, v{TM+3}",
             f"v_cmp_lt_f32 vcc, s29, v{TM+2}", "s_nop 1", f"s_cbranch_vccnz RB1_{uid}\nRB1R_{uid}:"]
    for qb in range(2):
        S=SB[sb]+16*qb
        for g in range(4):
            r=[S+4*g+i for i in range(4)]
            if not OPT.get('nornd'): o+= [f"v_cvt_pk_bf16_f32 v{x}, 0, v{x}" for x in r]
            o+= [f"v_fma_f32 v{x}, v{x}, s28, -v{MC+qb}" for x in r]
            o+= [f"v_exp_f32 v{x}, v{x}" for x in r]
            o+= [f"v_add_f32 v{L+qb}, v{L+qb}, v{x}" for x in r]
            o+= [f"v_cvt_pk_bf16_f32 v{S+2*g}, v{r[0]}, v{r[1]}", f"v_cvt_pk_bf16_f32 v{S+2*g+1}, v{r[2]}, v{r[3]}"]
    return [(x, 2 if x.startswith("v_exp") else 1) for x in o]
def rare_blocks(a, uid):
    a(f"RB1_{uid}:")
    for qb in range(2):
        t=TM+4*qb
        a(f"""v_mov_b32 v{t+2}, s57
        v_fmac_f32 v{t+2}, s28, v{t}
        v_max_f32 v{t+2}, v{t+2}, v{MC+qb}
        v_sub_f32 v{AL+qb}, v{MC+qb}, v{t+2}
        v_exp_f32 v{AL+qb}, v{AL+qb}
        v_mov_b32 v{MC+qb}, v{t+2}
        v_mul_f32 v{L+qb}, v{L+qb}, v{AL+qb}""")
    a(f"s_mov_b32 s30, 1\ns_branch RB1R_{uid}")
def rescale_block(a):
    a("RESC:\ns_nop 15\ns_nop 15")
    for db in range(8):
        for qb in range(2):
            b=(db*2+qb)*16
            for h in range(2):
                for i in range(8): a(f"v_accvgpr_read_b32 v{22+i}, a{b+8*h+i}")
                for i in range(8): a(f"v_mul_f32 v{22+i}, v{22+i}, v{AL+qb}")
                for i in range(8): a(f"v_accvgpr_write_b32 a{b+8*h+i}, v{22+i}")
    a("s_mov_b32 s30, 0\ns_nop 2\ns_setpc_b64 s[32:33]")
ISSUE={4:0,5:2,6:4,7:6,8:8,9:10,10:12,11:13,12:15,13:16,14:18,15:19}
NEXTG=[24,26,28,30]
class Sched:
    def __init__(s,a): s.a=a; s.q=[]
    def rd(s,lines,tag):
        if OPT.get('nolds'): return
        for x in lines: s.a(x); s.q.append(tag)
    def need(s,tag):
        if tag in s.q:
            i=max(k for k,t in enumerate(s.q) if t==tag)
            n=len(s.q)-1-i
            s.a(f"s_waitcnt lgkmcnt({n})"); s.q=s.q[i+1:]
def phase(sc, kind, slot, sb, nxt, dmas, fill, nfill, vm, resc_at_start=None, first_sm_gap=0):
    a=sc.a
    dg={}
    if dmas:
        gs=[1,3,5,7,9,11,14,17,20,21,22,23] if len(dmas)<=10 else list(range(1,24))
        step=len(gs)/len(dmas)
        for i,d in enumerate(dmas): dg.setdefault(gs[int(i*step)],[]).extend(d)
    for m in range(32):
        f=m>>1; qb=m&1; used=0
        if m==0 and resc_at_start is not None:
            a(f"s_cmp_eq_u32 s30, 0\ns_cbranch_scc1 NR_{resc_at_start}\ns_getpc_b64 s[32:33]\ns_add_u32 s32, s32, 12\ns_addc_u32 s33, s33, 0\ns_branch RESC\nNR_{resc_at_start}:")
        for ff,g in ISSUE.items():
            if g==m: r=frag_reads(kind,ff,slot); sc.rd(r,(kind,ff)); used+=len(r)
        if m==24 and nxt is not None:
            a(f"s_waitcnt vmcnt({vm}) lgkmcnt(0)\ns_barrier"); sc.q=[]; used+=2
        if nxt is not None and m in NEXTG:
            ff=NEXTG.index(m); r=frag_reads(nxt[0],ff,nxt[1]); sc.rd(r,(nxt[0]+'n',ff)); used+=len(r)
        if m in dg:
            for x in dg[m]: a(x)
            used+=len(dg[m])
        if m>=first_sm_gap:
            while fill and used+fill[0][1]<=nfill+ (1 if used==0 else 0):
                x,c=fill.pop(0); a(x); used+=c
        if qb==0: sc.need((kind,f))
        fr=FRAG(f)
        if kind=='K':
            S=SB[sb]+16*qb
            if OPT.get("m16"):
                for z in range(2):
                    zz=S+4*z+8*(f&1)
                    a(f"v_mfma_f32_16x16x32_bf16 v[{zz}:{zz+3}], v[{fr}:{fr+3}], {Q(qb,f)}, "+("0" if f<2 else f"v[{zz}:{zz+3}]"))
            else: a(f"v_mfma_f32_32x32x16_bf16 v[{S}:{S+15}], v[{fr}:{fr+3}], {Q(qb,f)}, "+("0" if f==0 else f"v[{S}:{S+15}]"))
        else:
            db,s=f>>1,f&1; P=SB[sb]+16*qb+4*s
            if OPT.get("m16"):
                for z in range(2):
                    zz=(db*2+qb)*16+4*z+8*s
                    a(f"v_mfma_f32_16x16x32_bf16 a[{zz}:{zz+3}], v[{fr}:{fr+3}], v[{P}:{P+3}], a[{zz}:{zz+3}]")
            else: a(f"v_mfma_f32_32x32x16_bf16 {O(db,qb)}, v[{fr}:{fr+3}], v[{P}:{P+3}], {O(db,qb)}")
    sc.q=[(t[0][0],t[1]) if t[0].endswith('n') else t for t in sc.q]
def flush(a,fill):
    print('flushed',len(fill))
    for x,c in fill: a(x)
    del fill[:]
OPT={}
class VM:
    def __init__(s,a): s.a=a; s.q=[]
    def add(s,tag,n=1): s.q+= [tag]*n
    def cnt(s,tag):
        i=max(k for k,t in enumerate(s.q) if t==tag); n=len(s.q)-1-i; s.q=s.q[i+1:]; return n
def k3(a, NF=5, **opt):
    OPT.clear(); OPT.update(opt)
    def stamp(i):
        if OPT.get("stamp"): a(f"s_memrealtime s[{60+2*i}:{61+2*i}]\ns_waitcnt lgkmcnt(0)")
    head(a,"k3_kernel")
    a(f"""s_cmp_ge_u32 s2, 256
    s_cbranch_scc1 K3_END
    s_load_dwordx4 s[4:7], s[0:1], 8
    s_load_dwordx2 s[34:35], s[0:1], 112
    v_lshrrev_b32 v20, 6, v0
    v_and_b32 v0, 63, v0
    v_readfirstlane_b32 s36, v20       ; wave
    s_and_b32 s37, s2, 7               ; kvh
    s_lshr_b32 s38, s2, 3
    s_and_b32 s40, s36, 1              ; hh
    s_lshr_b32 s41, s36, 1             ; khalf
    s_lshl_b32 s39, s37, 1
    s_add_u32 s39, s39, s40            ; head
    v_lshlrev_b32 v21, 4, v0           ; lane*16
    s_mul_i32 s42, s38, {2*28*1024}
    s_mul_i32 s43, s36, {14*1024}
    s_add_u32 s42, s42, s43
    s_waitcnt lgkmcnt(0)""")
    stamp(0)
    srd(a,16,34,2048*896,WS_HF); srd(a,44,34,448*8192,WS_WQF)
    vm=VM(a)
    srd(a,48,34,3584,WS_MOD)
    a(f"""s_mul_i32 s42, s38, {2*28*1024}
    s_mul_i32 s43, s40, {28*1024}
    s_mul_i32 s3, s41, {14*1024}
    s_add_u32 s43, s43, s3
    s_add_u32 s42, s42, s43
    s_lshl_b32 s58, s36, 12
    s_add_u32 s58, s58, 147456""")
    for i in range(14):
        a(f"s_add_u32 s3, s42, {(i&~3)*1024}\nbuffer_load_dwordx4 v[{160+4*i}:{163+4*i}], v21, s[16:19], s3 offen offset:{(i&3)*1024}")
    a("s_mov_b32 m0, s58\ns_nop 0")
    for i in range(4): a(f"buffer_load_dwordx4 v21, s[48:51], 0 offen offset:{i*1024} lds")
    vm.add('h',18)
    a(f"s_lshl_b32 s3, s39, 3\ns_lshl_b32 s42, s41, 2\ns_add_u32 s3, s3, s42\ns_mul_i32 s52, s3, {28*1024}")
    for dl in range(1,4): a(f"s_add_u32 s{52+dl}, s52, {dl*28*1024}")
    def wqr(ks,dl): return 32+((ks%14)*4+dl)*4
    def wq(ks):
        for dl in range(4):
            b=wqr(ks,dl)
            a(f"s_add_u32 s3, s{52+dl}, {(ks&~3)*1024}\nbuffer_load_dwordx4 v[{b}:{b+3}], v21, s[44:47], s3 offen offset:{(ks&3)*1024}")
        vm.add(('w',ks),4)
    for ks in range(8): wq(ks)
    srd(a,8,4,8<<20); srd(a,12,6,8<<20); srd(a,48,34,8*PART_SZ,WS_PART)
    a(f"""v_lshrrev_b32 v22, 5, v0
    v_xor_b32 v{VDK}, v0, v22
    v_lshlrev_b32 v{VDK}, 4, v{VDK}
    v_lshlrev_b32 v23, 2, v22
    v_xor_b32 v{VDV}, v0, v23
    v_lshlrev_b32 v{VDV}, 4, v{VDV}
    s_lshl_b32 s20, s37, 20
    s_lshl_b32 s3, s41, 19
    s_add_u32 s20, s20, s3
    s_lshl_b32 s3, s40, 13
    s_add_u32 s20, s20, s3
    s_add_u32 s21, s20, 4096
    s_mov_b32 s22, s20
    s_mov_b32 s23, s21
    s_mul_i32 s3, s41, {KT}
    s_mul_i32 s24, s40, {8*KP}
    s_add_u32 s24, s24, s3
    s_add_u32 s25, s24, {K1B}
    s_add_u32 s24, s24, {K0B}
    s_mul_i32 s3, s41, {2*VT}
    s_mul_i32 s26, s40, {8*VP}
    s_add_u32 s26, s26, s3
    s_add_u32 s27, s26, {VT}
    s_mov_b32 s28, {hex(f2u(CSC))}
    s_mov_b32 s29, {hex(f2u(THR-OPT.get("sh",0.0)))}
    s_mov_b32 s57, {hex(f2u(OPT.get("sh",0.0)))}
    v_mov_b32 v{AL}, s57
    s_mov_b32 s30, 0""")
    a(f"""v_and_b32 v24, 31, v0
    v_lshrrev_b32 v25, 1, v24
    v_mul_u32_u24 v{VK}, {KP}, v25
    v_and_b32 v25, 1, v24
    v_lshl_add_u32 v{VK}, v25, 9, v{VK}
    v_xor_b32 v25, v25, v22
    v_lshl_add_u32 v{VK}, v25, 4, v{VK}
    s_mul_i32 s3, s41, {KT}
    s_add_u32 s3, s3, {K1B}
    v_add_u32 v{VK}, s3, v{VK}
    v_bfe_u32 v24, v0, 3, 1            ; r>>1
    v_lshl_add_u32 v24, v22, 1, v24    ; 2h'+(r>>1)
    v_mul_u32_u24 v{VVE}, {VP}, v24
    v_bfe_u32 v24, v0, 2, 1            ; odd
    v_lshl_add_u32 v{VVE}, v24, 9, v{VVE}
    v_bfe_u32 v25, v0, 4, 1
    v_lshl_add_u32 v{VVE}, v25, 5, v{VVE}
    v_and_b32 v25, 3, v0
    v_lshl_add_u32 v{VVE}, v25, 3, v{VVE}
    s_mul_i32 s3, s41, {2*VT}
    v_add_u32 v{VVE}, s3, v{VVE}
    v_lshlrev_b32 v24, 6, v24
    v_sub_u32 v{VVO}, v{VVE}, v24
    v_add_u32 v{VVE}, v{VVE}, v24""")
    for i in range(160,256): a(f"v_accvgpr_write_b32 a{i}, 0")
    a(f"""v_lshrrev_b32 v24, 5, v0
    v_lshlrev_b32 v24, 5, v24
    s_mul_i32 s3, s41, {14*64}
    s_add_u32 s3, s3, s58
    v_add_u32 v24, s3, v24
    v_add_u32 v25, s43, v21
    s_waitcnt vmcnt({vm.cnt('h')})""")
    def mrd(i):
        b=216+(i&1)*16
        for j in range(2): a(f"ds_read_b128 v[{b+4*j}:{b+4*j+3}], v24 offset:{i*64+16*j}\nds_read_b128 v[{b+8+4*j}:{b+11+4*j}], v24 offset:{1792+i*64+16*j}")
    mrd(0)
    for i in range(14):
        b=216+(i&1)*16; x=160+4*i; t=248 if i&1 else 8
        if i+1<14: mrd(i+1)
        unpack8(a,t,x)
        a(f"s_waitcnt lgkmcnt({4 if i+1<14 else 0})")
        for j in range(4): a(f"v_pk_mul_f32 v[{t+2*j}:{t+2*j+1}], v[{t+2*j}:{t+2*j+1}], v[{b+8+2*j}:{b+9+2*j}]")
        for j in range(8): rnd(a,t+j)
        for j in range(4): a(f"v_pk_add_f32 v[{t+2*j}:{t+2*j+1}], v[{t+2*j}:{t+2*j+1}], v[{b+2*j}:{b+2*j+1}]")
        pack8(a,x,t)
        a(f"ds_write_b128 v25, v[{x}:{x+3}] offset:{i*1024}")
    a("s_waitcnt lgkmcnt(0)\ns_barrier")
    stamp(1)
    def hrd(ks):
        for qb in range(2):
            b=128+((ks%4)*2+qb)*4
            a(f"ds_read_b128 a[{b}:{b+3}], v21 offset:{(qb*28+ks)*1024}")
    hrd(0); hrd(1)
    for ks in range(28):
        if ks+2<28: hrd(ks+2)
        if ks+8<28: wq(ks+8)
        if 6<=ks<22:
            for x in dma('K',(ks-6)>>3,(ks-6)&7): a(x)
            vm.add('K')
            if (ks-6)&7==7:
                for x in adv('K'): a(x)
        a(f"s_waitcnt vmcnt({vm.cnt(('w',ks))}) lgkmcnt({min(2,27-ks)*2})")
        for dl in range(4):
            for qb in range(2):
                c=(dl*2+qb)*16; b=wqr(ks,dl); hb=128+((ks%4)*2+qb)*4
                a(f"v_mfma_f32_32x32x16_bf16 a[{c}:{c+15}], v[{b}:{b+3}], a[{hb}:{hb+3}], "+("0" if ks==0 else f"a[{c}:{c+15}]"))
    stamp(2)
    a("s_barrier\ns_lshl_b32 s3, s40, 15\nv_add_u32 v25, s3, v21\ns_lshl_b32 s42, s41, 13\ns_add_u32 s3, s3, s42\nv_add_u32 v24, s3, v21\ns_nop 7")
    for dl in range(4):
        for qb in range(2):
            c=(dl*2+qb)*16; t=32+qb*24
            for i in range(16): a(f"v_accvgpr_read_b32 v{t+i}, a{c+i}")
            for i in range(8): a(f"v_cvt_pk_bf16_f32 v{t+16+i}, v{t+2*i}, v{t+2*i+1}")
            for h in range(2): a(f"ds_write_b128 v24, v[{t+16+4*h}:{t+19+4*h}] offset:{qb*16384+(2*dl+h)*1024}")
    a("s_waitcnt lgkmcnt(0)\ns_barrier")
    for s in range(16):
        for qb in range(2): a(f"ds_read_b128 {Q(qb,s)}, v25 offset:{qb*16384+s*1024}")
    for i in range(0,40): a(f"v_accvgpr_write_b32 a{i}, 0")
    a("s_waitcnt vmcnt(0) lgkmcnt(0)\ns_barrier")
    for p in range(8):
        for x in dma('V',0,p): a(x)
    for x in adv('V'): a(x)
    stamp(3)
    sc=Sched(a)
    for f in range(4): sc.rd(frag_reads('K',f,0),('K',f))
    D=lambda k,s:[dma(k,s,p) for p in range(8)]+[adv(k)]
    fill=[(f"v_accvgpr_write_b32 a{i}, 0",1) for i in range(40,160)]
    phase(sc,'K',0,0,('K',1),[],fill,NF,8); flush(a,fill)
    fill=softmax(0,True,"i0")
    phase(sc,'K',1,1,('V',0),D('K',0)+D('V',1),fill,7,16,first_sm_gap=3); flush(a,fill)
    if OPT.get("stamp"): a("s_memrealtime s[68:69]")
    a("s_mov_b32 s31, 15\ns_nop 1\nK3_LOOP:")
    st=list(sc.q)
    for par in (1,0):
        fill=softmax(par,False,f"l{par}")
        phase(sc,'V',1-par,1-par,('K',1-par),D('K',par),fill,NF,16,first_sm_gap=3)
        phase(sc,'K',1-par,1-par,('V',par),D('V',1-par),fill,NF,16,resc_at_start=f"l{par}"); flush(a,fill)
    assert st==sc.q,(st,sc.q)
    a("s_sub_u32 s31, s31, 1\ns_cmp_lg_u32 s31, 0\ns_cbranch_scc1 K3_LOOP")
    if OPT.get("stamp"): a("s_memrealtime s[70:71]")
    srd(a,44,34,4096*896,WS_WOF)
    a(f"""s_mul_i32 s56, s36, 3             ; nb0
    s_mul_i32 s52, s37, {32*14}
    s_add_u32 s53, s52, s41
    s_add_u32 s53, s53, 12
    s_lshl_b32 s53, s53, 10
    s_add_u32 s52, s52, s56
    s_lshl_b32 s52, s52, 10""")
    def wo(g):
        p,k=g>>5,g&31; b=128+(g%32)*4
        return [f"s_add_u32 s3, s{52 if p<3 else 53}, {k*14336+(p%3)*1024 if p<3 else k*14336}", f"buffer_load_dwordx4 v[{b}:{b+3}], v21, s[44:47], s3 offen"]
    fill=softmax(1,False,"t")
    phase(sc,'V',0,0,('V',1),[],fill,7,0,first_sm_gap=3); flush(a,fill)
    a("s_nop 1")
    phase(sc,'V',1,1,None,[wo(4*k)+wo(4*k+1)+wo(4*k+2)+wo(4*k+3) for k in range(7)],[],NF,0,resc_at_start="t")
    stamp(6)
    a(f"""v_mov_b32 v{TM}, v{L}
    v_mov_b32 v{TM+1}, v{L+1}
    s_lshl_b32 s3, s36, 10
    v_permlane32_swap_b32 v{L}, v{TM}
    v_permlane32_swap_b32 v{L+1}, v{TM+1}
    s_add_u32 s3, s3, 131072
    v_add_u32 v26, s3, v21
    v_add_f32 v{L}, v{L}, v{TM}
    v_add_f32 v{L+1}, v{L+1}, v{TM+1}
    s_xor_b32 s3, s3, 2048
    v_add_u32 v27, s3, v21
    ds_write_b128 v26, v[{MC}:{MC+3}]
    s_lshl_b32 s3, s36, 15
    v_add_u32 v24, s3, v21
    s_xor_b32 s3, s3, 65536
    v_add_u32 v25, s3, v21
    s_nop 7
    s_barrier
    s_cmp_eq_u32 s41, 0
    s_cbranch_scc0 EPI1""")
    for kh in range(2):
        if kh==1: a("EPI1:")
        for t in range(8):
            b=((4*(1-kh)+(t>>1))*2+(t&1))*16
            for i in range(4): a(f"ds_write_b128 v24, a[{b+4*i}:{b+4*i+3}] offset:{(t*4+i)*1024}")
        a("s_waitcnt lgkmcnt(0)\ns_barrier\nds_read_b128 v[12:15], v27")
        q=['m']
        def xr(t):
            for i in range(4): a(f"ds_read_b128 v[{64+(t%4)*16+4*i}:{67+(t%4)*16+4*i}], v25 offset:{(t*4+i)*1024}"); q.append(t)
        for t in range(3): xr(t)
        a("s_waitcnt lgkmcnt(12)"); del q[0]
        for qb in range(2):
            fo=28 if qb==0 else 16
            a(f"""v_max_f32 v10, v{MC+qb}, v{12+qb}
            v_sub_f32 v11, v{MC+qb}, v10
            v_sub_f32 v10, v{12+qb}, v10
            v_exp_f32 v11, v11
            v_exp_f32 v10, v10
            s_nop 0
            v_mul_f32 v{fo}, v10, v{14+qb}
            v_fma_f32 v{fo}, v11, v{L+qb}, v{fo}
            v_rcp_f32 v{fo+1}, v{fo}
            s_nop 0
            v_mul_f32 v{fo+2}, v10, v{fo+1}
            v_mul_f32 v{fo+3}, v10, v{fo+1}
            v_mul_f32 v{fo}, v11, v{fo+1}
            v_mul_f32 v{fo+1}, v11, v{fo+1}""")
        for t in range(8):
            b=((4*kh+(t>>1))*2+(t&1))*16; r=32+(t&1)*16; x=64+(t%4)*16; fo=28 if (t&1)==0 else 16
            if t+3<8: xr(t+3)
            for i in range(16): a(f"v_accvgpr_read_b32 v{r+i}, a{b+i}")
            for i in range(8): a(f"v_pk_mul_f32 v[{r+2*i}:{r+2*i+1}], v[{r+2*i}:{r+2*i+1}], v[{fo}:{fo+1}]")
            j=max(k for k,u in enumerate(q) if u==t); a(f"s_waitcnt lgkmcnt({min(15,len(q)-1-j)})"); del q[:j+1]
            for i in range(8): a(f"v_pk_fma_f32 v[{r+2*i}:{r+2*i+1}], v[{x+2*i}:{x+2*i+1}], v[{fo+2}:{fo+3}], v[{r+2*i}:{r+2*i+1}]")
            for i in range(8): a(f"v_cvt_pk_bf16_f32 v{x+i}, v{r+2*i}, v{r+2*i+1}")
            for h in range(2): a(f"ds_write_b128 v25, v[{x+4*h}:{x+4*h+3}] offset:{t*4096+h*1024}"); q.append('w')
        if kh==0: a("s_branch EPI2")
    a(f"""EPI2:
    v_add_u32 v26, 65536, v21
    s_lshl_b32 s3, s40, 12
    v_add_u32 v27, s3, v21
    v_add_u32 v28, s3, v26
    v_and_b32 v24, 31, v0
    v_lshlrev_b32 v24, 2, v24
    v_lshrrev_b32 v22, 5, v0
    v_mul_u32_u24 v22, {2*1792}, v22
    v_add_u32 v24, v22, v24
    s_mul_i32 s42, s37, {PART_SZ//2}
    s_mul_i32 s3, s38, {32*1792}
    s_add_u32 s42, s42, s3
    s_mul_i32 s3, s40, {16*1792}
    s_add_u32 s43, s42, s3
    s_lshl_b32 s3, s41, 7
    s_add_u32 s43, s43, s3
    s_add_u32 s43, s43, {12*128}
    s_lshl_b32 s3, s56, 7
    s_add_u32 s42, s42, s3
    s_waitcnt lgkmcnt(0)
    s_barrier""")
    stamp(8)
    vq=[('w',g) for g in range(28)]
    def yrd(g):
        p,k=g>>5,g&31
        hh,kh,dbl,s_=k>>4,(k>>3)&1,(k>>1)&3,k&1
        reg=(hh+2*kh)^2
        for qb in range(2 if p<3 else 1):
            off=reg*32768+(dbl*2+qb)*4096+s_*1024; b=32+((g%4)*2+qb)*4
            base=(21 if off<65536 else 26) if p<3 else (27 if off<65536 else 28)
            a(f"ds_read_b128 v[{b}:{b+3}], v{base} offset:{off%65536}")
    def stores(p):
        o=[]
        for qb in range(2 if p<3 else 1):
            for r in range(0,16,2):
                t=64+(len(o)%8)*2; c=(p*2+qb)*16+r
                o.append([f"v_accvgpr_read_b32 v{t}, a{c}", f"v_accvgpr_read_b32 v{t+1}, a{c+1}", f"s_add_u32 s3, s{42 if p<3 else 43}, {(16*qb+4*(r>>2)+((r&3)>>1))*1792+(p*128 if p<3 else 0)}",
                          f"v_cvt_pk_bf16_f32 v{t}, v{t}, v{t+1}", f"buffer_store_dword v{t}, v24, s[48:51], s3 offen nt"])
        return o
    yrd(0); yrd(1)
    pend=[]
    for g in range(128):
        p,k=g>>5,g&31
        if k==8 and p>0: pend=stores(p-1)
        if g+2<128: yrd(g+2)
        if g+28<128:
            for x in wo(g+28): a(x)
            vq.append(('w',g+28))
        for _ in range(1):
            if pend:
                for x in pend.pop(0): a(x)
                vq.append('s')
        j=vq.index(('w',g)); nv=len(vq)-1-j; del vq[:j+1]
        nl=sum((2 if ((g+d)>>5)<3 else 1) for d in (1,2) if g+d<128)
        a(f"s_waitcnt vmcnt({min(63,nv)}) lgkmcnt({nl})")
        for qb in range(2 if p<3 else 1):
            c=(p*2+qb)*16; b=128+(g%32)*4; yb=32+((g%4)*2+qb)*4
            a(f"v_mfma_f32_32x32x16_bf16 a[{c}:{c+15}], v[{yb}:{yb+3}], v[{b}:{b+3}], "+("0" if k==0 else f"a[{c}:{c+15}]"))
    stamp(9)
    a("s_nop 15")
    for x in stores(3):
        for y in x: a(y)
    if OPT.get("stamp"):
        a("s_waitcnt vmcnt(0)"); stamp(7)
        a("s_load_dwordx2 s[4:5], s[0:1], 104\ns_waitcnt lgkmcnt(0)"); srd(a,8,4,256)
        a(f"s_cmp_lg_u32 s2, 77\ns_cbranch_scc1 K3_END\ns_lshl_b32 s3, s36, 6")
        for i in range(10): a(f"s_sub_u32 s4, s{60+2*i}, s60\nv_mov_b32 v1, s4\nv_mov_b32 v2, 0\nbuffer_store_dword v1, v2, s[8:11], s3 offen offset:{4*i}")
    a("K3_END:\ns_endpgm")
    for u in ("l1","l0","t"): rare_blocks(a,u)
    rescale_block(a)
    return desc("k3_kernel",512,80,256)

def k4(a):
    head(a,"k4_kernel")
    a(f"""s_cmp_ge_u32 s2, 256
    s_cbranch_scc1 K4_END
    s_load_dwordx2 s[34:35], s[0:1], 112
    v_lshrrev_b32 v2, 6, v0
    v_and_b32 v0, 63, v0
    v_readfirstlane_b32 s36, v2
    s_and_b32 s37, s2, 1               ; nh
    s_bfe_u32 s38, s2, 0x20001         ; ksplit
    s_lshr_b32 s39, s2, 3              ; qt
    v_lshlrev_b32 v1, 4, v0
    s_waitcnt lgkmcnt(0)""")
    srd(a,8,34,2048*8192,WS_OF); srd(a,12,34,4096*896,WS_WOF); srd(a,16,34,4*PART_SZ,WS_PART)
    a(f"""s_lshl_b32 s40, s38, 6
    s_lshl_b32 s3, s36, 4
    s_add_u32 s40, s40, s3             ; kstep0
    s_lshl_b32 s20, s39, 9
    s_add_u32 s20, s20, s40
    s_lshl_b32 s20, s20, 10
    s_add_u32 s21, s20, 262144
    s_mul_i32 s22, s40, 14
    s_mul_i32 s3, s37, 7
    s_add_u32 s22, s22, s3
    s_lshl_b32 s22, s22, 10""")
    NS=6
    def ld(k):
        b=16+(k%NS)*36
        for qb in range(2): a(f"s_add_u32 s3, s{20+qb}, {(k&~3)*1024}\nbuffer_load_dwordx4 v[{b+4*qb}:{b+4*qb+3}], v1, s[8:11], s3 offen offset:{(k&3)*1024}")
        for n in range(7): a(f"s_add_u32 s3, s22, {k*14336+(n&~3)*1024}\nbuffer_load_dwordx4 v[{b+8+4*n}:{b+11+4*n}], v1, s[12:15], s3 offen offset:{(n&3)*1024}")
    for k in range(NS-1): ld(k)
    for k in range(16):
        if k+NS-1<16: ld(k+NS-1)
        a(f"s_waitcnt vmcnt({9*min(NS-1,15-k)})")
        b=16+(k%NS)*36
        for n in range(7):
            for qb in range(2):
                c=(n*2+qb)*16
                a(f"v_mfma_f32_32x32x16_bf16 a[{c}:{c+15}], v[{b+8+4*n}:{b+11+4*n}], v[{b+4*qb}:{b+4*qb+3}], "+("0" if k==0 else f"a[{c}:{c+15}]"))
    RS=912; WR=32*RS
    a(f"""v_and_b32 v2, 31, v0
    v_mul_u32_u24 v2, {RS}, v2
    v_lshrrev_b32 v3, 5, v0
    v_lshl_add_u32 v2, v3, 4, v2
    s_mul_i32 s3, s36, {WR}
    v_add_u32 v2, s3, v2
    s_lshl_b32 s41, s36, 3""")
    for i in range(7):
        a(f"""v_add_u32 v4, {i*64}, v0
        v_mul_u32_u24 v5, 1171, v4
        v_lshrrev_b32 v5, 16, v5
        v_mul_u32_u24 v6, 56, v5
        v_sub_u32 v6, v4, v6
        v_add_u32 v5, s41, v5
        v_mul_u32_u24 v{16+i}, {RS}, v5
        v_lshl_add_u32 v{16+i}, v6, 4, v{16+i}
        v_add_u32 v{32+i}, {2*WR}, v{16+i}
        v_mul_u32_u24 v{24+i}, 1792, v5
        v_lshl_add_u32 v{24+i}, v6, 4, v{24+i}""")
    a(f"""s_mul_i32 s42, s38, {PART_SZ}
    s_mul_i32 s3, s39, {64*1792}
    s_add_u32 s42, s42, s3
    s_mul_i32 s3, s37, 896
    s_add_u32 s42, s42, s3
    s_nop 7""")
    for t in range(2):
        if t: a("s_barrier")
        for n in range(7):
            for q in range(4):
                c=(n*2+t)*16+4*q
                a(f"ds_write_b128 v2, a[{c}:{c+3}] offset:{n*128+q*32}")
        a("s_waitcnt lgkmcnt(0)\ns_barrier")
        for i in range(7):
            for s in range(4):
                b=48+(i*4+s)*4
                a(f"ds_read_b128 v[{b}:{b+3}], v{(16 if s<2 else 32)+i} offset:{(s&1)*WR}")
        a(f"s_add_u32 s3, s42, {t*32*1792}")
        for i in range(7):
            b=48+i*16
            a(f"s_waitcnt lgkmcnt({min(15,(6-i)*4)})")
            for c in range(4): a(f"v_add_f32 v{b+c}, v{b+c}, v{b+4+c}\nv_add_f32 v{b+8+c}, v{b+8+c}, v{b+12+c}\nv_add_f32 v{b+c}, v{b+c}, v{b+8+c}")
            a(f"buffer_store_dwordx4 v[{b}:{b+3}], v{24+i}, s[16:19], s3 offen")
    a("K4_END:\ns_endpgm")
    return desc("k4_kernel",480,48,256)
```

```python
import sys
from common import *
import small, attn
def build(path, **kw):
    a=A(); d=""
    d+=small.k1(a); d+=attn.k3(a, **kw); d+=small.k5(a); d+=small.k6(a)
    ref=open(f"cdna_kernels/{NAME}.s.ref").read().split("; Override launch")[0]
    hdr=ref+f"""; @launch kernel=k1_kernel grid=(1076,1,1) block=(256,1,1) lds=16640
; @launch kernel=k3_kernel grid=(256,1,1) block=(256,1,1) lds=163840
; @launch kernel=k5_kernel grid=(512,1,1) block=(256,1,1) lds=64
; @launch kernel=k6_kernel grid=(56,1,1) block=(256,1,1) lds=16384
.amdgcn_target "amdgcn-amd-amdhsa--gfx950"
.text
"""
    open(path,"w").write(hdr+a.text()+'.section .rodata,"a"\n.p2align 6\n'+d)
if __name__=="__main__":
    build(f"cdna_kernels/{NAME}.s")
```

```python
from common import *
LOG2E=1.4426950408889634
K2SH=3
def k1(a):
    head(a,"k1_kernel")
    a("s_cmp_ge_u32 s2, 564\ns_cbranch_scc1 K1_LN")
    a("s_load_dwordx4 s[4:7], s[0:1], 24\ns_load_dwordx4 s[8:11], s[0:1], 80\ns_load_dwordx4 s[36:39], s[0:1], 104\ns_waitcnt lgkmcnt(0)\ns_mov_b32 s12, s38\ns_mov_b32 s13, s39")
    a("s_mov_b32 s30, 0x05040100\ns_mov_b32 s31, 0x07060302")
    a("s_cmp_ge_u32 s2, 84\ns_cbranch_scc1 K1_W")
    srd(a,16,8,896); srd(a,20,10,448*5376); srd(a,24,12,2688*4,WS_MOD); srd(a,40,36,256)
    a(f"""v_lshlrev_b32 v1, 1, v0
    buffer_load_ushort v2, v1, s[16:19], 0 offen
    buffer_load_ushort v3, v1, s[16:19], 0 offen offset:512
    v_and_b32 v4, 15, v0
    v_lshrrev_b32 v5, 4, v0
    v_mul_u32_u24 v6, {28*5376}, v5
    v_lshl_add_u32 v6, v4, 2, v6
    s_lshl_b32 s3, s2, 6""")
    for i in range(28):
        a(f"s_add_u32 s14, s3, {i*5376}\nbuffer_load_dword v{16+i}, v6, s[20:23], s14 offen")
    a("s_waitcnt vmcnt(28)")
    for r in (2,3):
        a(f"""v_lshlrev_b32 v{r}, 16, v{r}
        v_mul_f32 v7, {hex(f2u(-LOG2E))}, v{r}
        v_exp_f32 v7, v7
        s_nop 0
        v_add_f32 v7, 1.0, v7
        v_rcp_f32 v7, v7
        s_nop 0
        v_mul_f32 v{r}, v{r}, v7""")
        rnd(a,r)
    a(f"""v_lshlrev_b32 v7, 2, v0
    ds_write_b32 v7, v2
    ds_write_b32 v7, v3 offset:1024
    s_waitcnt lgkmcnt(0)
    s_barrier
    v_mul_u32_u24 v7, 112, v5""")
    for i in range(7): a(f"ds_read_b128 v[{44+4*i}:{47+4*i}], v7 offset:{16*i}")
    a("v_mov_b32 v8, 0\nv_mov_b32 v9, 0\ns_waitcnt vmcnt(0) lgkmcnt(0)")
    for i in range(28):
        a(f"v_lshlrev_b32 v10, 16, v{16+i}\nv_and_b32 v11, 0xffff0000, v{16+i}\nv_fmac_f32 v8, v10, v{44+i}\nv_fmac_f32 v9, v11, v{44+i}")
    a(f"""v_lshlrev_b32 v7, 3, v0
    ds_write_b64 v7, v[8:9] offset:4096
    s_waitcnt lgkmcnt(0)
    s_barrier
    v_cmp_gt_u32 vcc, 32, v0
    s_and_saveexec_b64 s[14:15], vcc
    s_cbranch_execz K1_END
    v_lshlrev_b32 v7, 2, v0""")
    for g in range(16): a(f"ds_read_b32 v{16+g}, v7 offset:{4096+128*g}")
    a("s_waitcnt lgkmcnt(0)")
    for g in range(1,16): a(f"v_add_f32 v16, v16, v{16+g}")
    rnd(a,16)
    a("s_sub_u32 s3, s2, 14\ns_cmp_lt_u32 s3, 14\ns_cbranch_scc0 K1_NOCA\nv_add_f32 v16, 1.0, v16"); rnd(a,16)
    a("""K1_NOCA:
    s_lshl_b32 s3, s2, 7
    buffer_store_dword v16, v7, s[24:27], s3 offen
    s_endpgm""")
    a("K1_W:\ns_cmp_ge_u32 s2, 308\ns_cbranch_scc1 K1_WO")
    srd(a,16,4,448*8192); srd(a,20,12,448*8192,WS_WQF)
    a(f"""v_lshrrev_b32 v1, 6, v0
    s_sub_u32 s3, s2, 84
    s_nop 0
    v_readfirstlane_b32 s14, v1
    s_lshl_b32 s3, s3, 2
    s_add_u32 s3, s3, s14
    s_and_b32 s14, s3, 1           ; hh
    s_lshr_b32 s15, s3, 1
    s_mul_hi_u32 s28, s15, {(2**32+27)//28}   ; head
    s_mul_i32 s29, s28, 28
    s_sub_u32 s29, s15, s29        ; ks
    s_lshl_b32 s32, s29, 1
    s_add_u32 s32, s32, s14
    s_lshl_b32 s32, s32, 16        ; (16ks+8hh)*8192
    s_lshl_b32 s33, s28, 9
    s_add_u32 s32, s32, s33        ; + head*512
    v_and_b32 v2, 63, v0
    v_lshlrev_b32 v3, 3, v2""")
    for e in range(8): a(f"s_add_u32 s33, s32, {e*8192}\nbuffer_load_dwordx2 v[{16+2*e}:{17+2*e}], v3, s[16:19], s33 offen nt")
    a(f"""v_lshrrev_b32 v4, 3, v2
    v_lshlrev_b32 v4, 11, v4
    v_and_b32 v5, 4, v2
    v_lshl_add_u32 v4, v5, 6, v4
    v_and_b32 v5, 1, v2
    v_lshl_add_u32 v4, v5, 7, v4
    v_and_b32 v5, 2, v2
    v_lshl_add_u32 v4, v5, 5, v4
    s_and_b32 s34, s3, 3
    s_lshl_b32 s34, s34, 9
    v_add_u32 v4, s34, v4
    s_mul_i32 s33, s28, {8*28*1024}
    s_and_b32 s34, s29, 30
    s_lshl_b32 s34, s34, 10
    s_add_u32 s33, s33, s34
    v_lshrrev_b32 v6, 7, v0
    v_mul_u32_u24 v6, {28*1024}, v6
    v_and_b32 v5, 127, v0
    v_lshl_add_u32 v6, v5, 4, v6
    s_mov_b32 s35, {2*28*1024}
    s_branch K1_TR""")
    a("K1_WO:")
    srd(a,16,6,4096*896); srd(a,20,12,4096*896,WS_WOF)
    a(f"""s_sub_u32 s3, s2, 308
    v_cmp_le_u32 vcc, 112, v0
    v_mov_b32 v5, 0
    s_nop 0
    v_cndmask_b32 v1, v5, 1, vcc   ; h'
    v_mul_u32_u24 v2, 112, v1
    v_sub_u32 v2, v0, v2           ; g
    v_mul_u32_u24 v3, {4*896}, v1
    v_lshl_add_u32 v3, v2, 3, v3
    s_mul_i32 s32, s3, {16*896}""")
    for e in range(8): a(f"s_add_u32 s33, s32, {(8*(e>>2)+(e&3))*896}\nbuffer_load_dwordx2 v[{16+2*e}:{17+2*e}], v3, s[16:19], s33 offen nt")
    a(f"""v_lshrrev_b32 v4, 3, v2
    v_lshlrev_b32 v4, 10, v4
    v_lshl_add_u32 v4, v1, 9, v4
    v_and_b32 v5, 7, v2
    v_lshl_add_u32 v4, v5, 6, v4
    s_mul_i32 s33, s3, {14*1024}
    v_lshlrev_b32 v6, 4, v0
    s_mov_b32 s35, 4096
    v_cmp_gt_u32 vcc, 224, v0
    v_mov_b32 v5, 16384
    s_nop 0
    v_cndmask_b32 v4, v5, v4, vcc
    s_add_u32 s22, s33, {14*1024}""")
    a("K1_TR:\ns_waitcnt vmcnt(0)")
    for b in range(4):
        for p in range(4):
            a(f"v_perm_b32 v{32+4*b+p}, v{16+4*p+2+(b>>1)}, v{16+4*p+(b>>1)}, s{30+(b&1)}")
    for b in range(4): a(f"ds_write_b128 v4, v[{32+4*b}:{35+4*b}] offset:{16*b}")
    a("v_lshlrev_b32 v7, 4, v0\ns_waitcnt lgkmcnt(0)\ns_barrier")
    for j in range(4): a(f"ds_read_b128 v[{32+4*j}:{35+4*j}], v7 offset:{4096*j}")
    for j in range(4):
        a(f"s_waitcnt lgkmcnt({3-j})\nbuffer_store_dwordx4 v[{32+4*j}:{35+4*j}], v6, s[20:23], s33 offen\ns_add_u32 s33, s33, s35")
    a("K1_END:\ns_endpgm\nK1_LN:\ns_sub_u32 s2, s2, 564")
    k2(a)
    return desc("k1_kernel",80,48,80)

def rowsetup(a, nwg, end, sh=2):
    a(f"""s_cmp_ge_u32 s2, {nwg}
    s_cbranch_scc1 {end}
    v_lshrrev_b32 v1, 6, v0
    s_nop 0
    v_readfirstlane_b32 s3, v1
    s_lshl_b32 s4, s2, {sh}
    s_add_u32 s3, s3, s4
    v_and_b32 v1, 63, v0
    v_cmp_gt_u32 vcc, 56, v1
    v_mov_b32 v2, 0
    s_nop 0
    v_cndmask_b32 v2, v2, 1.0, vcc""")
def k2(a):
    rowsetup(a,512,"K2_END")
    a("s_load_dwordx2 s[4:5], s[0:1], 0\ns_load_dwordx4 s[36:39], s[0:1], 104\ns_waitcnt lgkmcnt(0)")
    srd(a,16,4,2048*896); srd(a,20,38,2688*4,WS_MOD); srd(a,24,38,2048*896,WS_HF); srd(a,40,38,2048,WS_R)
    a(f"""v_lshlrev_b32 v3, 4, v1
    s_mul_i32 s6, s3, 896
    buffer_load_dwordx4 v[4:7], v3, s[16:19], s6 offen
    v_lshlrev_b32 v8, 5, v1
    s_waitcnt vmcnt(0)""")
    unpack8(a,16,4)
    layernorm(a,16,24,32,2)
    pack8(a,4,24)
    a(f"""s_lshr_b32 s6, s3, 5
    s_mul_i32 s6, s6, {28*1024}
    s_and_b32 s7, s3, 31
    s_lshl_b32 s7, s7, 4
    s_add_u32 s6, s6, s7
    v_lshlrev_b32 v3, 9, v1
    v_cmp_gt_u32 vcc, 56, v1
    s_and_saveexec_b64 s[14:15], vcc
    buffer_store_dwordx4 v[4:7], v3, s[24:27], s6 offen
    K2_END:
    s_endpgm""")

def k5(a):
    head(a,"k5_kernel")
    rowsetup(a,512,"K5_END")
    a("s_load_dwordx2 s[4:5], s[0:1], 0\ns_load_dwordx2 s[8:9], s[0:1], 48\ns_load_dwordx2 s[10:11], s[0:1], 96\ns_load_dwordx2 s[12:13], s[0:1], 112\ns_load_dwordx2 s[56:57], s[0:1], 104\ns_waitcnt lgkmcnt(0)")
    srd(a,16,4,2048*896); srd(a,20,12,2688*4,WS_MOD); srd(a,24,12,4*PART_SZ,WS_PART); srd(a,28,8,896)
    srd(a,32,10,2048*896); srd(a,36,12,2048*896,WS_X1); srd(a,40,12,2048*896,WS_H2); srd(a,44,12,8192,WS_R); srd(a,60,56,256)
    a("v_lshlrev_b32 v3, 4, v1\nv_lshlrev_b32 v8, 5, v1\ns_lshr_b32 s6, s3, 1\ns_mul_i32 s15, s6, 1792\ns_mul_i32 s6, s3, 896\ns_and_b32 s7, s3, 1\ns_mul_i32 s7, s7, 0x02020000\ns_add_u32 s52, s7, 0x01000c0c")
    PB=lambda p: 16+8*p if p<4 else 32+8*p
    for p in range(8):
        b=PB(p)
        a(f"s_add_u32 s14, s15, {p*PART_SZ//2}\nbuffer_load_dwordx4 v[{b}:{b+3}], v8, s[24:27], s14 offen\nbuffer_load_dwordx4 v[{b+4}:{b+7}], v8, s[24:27], s14 offen offset:16")
    a("buffer_load_dwordx4 v[4:7], v3, s[16:19], s6 offen\nbuffer_load_dwordx4 v[12:15], v3, s[28:31], 0 offen")
    for m in range(2,6):
        a(f"s_mov_b32 s14, {m*1792}\nbuffer_load_dwordx4 v[{96+8*(m-2)}:{99+8*(m-2)}], v8, s[20:23], s14 offen\nbuffer_load_dwordx4 v[{100+8*(m-2)}:{103+8*(m-2)}], v8, s[20:23], s14 offen offset:16")
    P=48
    for p in range(8):
        a(f"s_waitcnt vmcnt({24-2*p})")
        for i in range(8):
            x=PB(p)+i
            if p==0: a(f"v_perm_b32 v{P+i}, v{x}, v{x}, s52")
            else: a(f"v_perm_b32 v{x}, v{x}, v{x}, s52\nv_add_f32 v{P+i}, v{P+i}, v{x}")
    a("s_waitcnt vmcnt(0)")
    unpack8(a,40,12)
    for i in range(8): a(f"v_add_f32 v{112+i}, 1.0, v{112+i}"); rnd(a,112+i)
    a("v_cmp_gt_u32 s[48:49], 56, v1\nv_cmp_eq_u32 s[50:51], 0, v1")
    unpack8(a,16,4)
    for i in range(8):
        rnd(a,P+i)
        a(f"v_mul_f32 v{P+i}, v{P+i}, v{96+i}"); rnd(a,P+i)
        a(f"v_add_f32 v{16+i}, v{16+i}, v{P+i}"); rnd(a,16+i)
    layernorm(a,16,24,32,2)
    a("v_mov_b32 v36, 0")
    for i in range(8):
        a(f"v_mul_f32 v{24+i}, v{24+i}, v{112+i}"); rnd(a,24+i)
        a(f"v_add_f32 v{24+i}, v{24+i}, v{104+i}"); rnd(a,24+i)
        a(f"v_fmac_f32 v36, v{24+i}, v{40+i}")
        a(f"v_mul_f32 v{P+i}, v{24+i}, v{120+i}"); rnd(a,P+i)
        a(f"v_add_f32 v{P+i}, v{P+i}, v{16+i}")
    a("v_mul_f32 v36, v36, v2")
    o=64
    pack8(a,o,P); pack8(a,o+4,16); pack8(a,o+8,24)
    a(f"""s_mov_b64 exec, s[48:49]
    buffer_store_dwordx4 v[{o}:{o+3}], v3, s[32:35], s6 offen
    buffer_store_dwordx4 v[{o+4}:{o+7}], v3, s[36:39], s6 offen
    buffer_store_dwordx4 v[{o+8}:{o+11}], v3, s[40:43], s6 offen
    s_mov_b64 exec, -1""")
    wave_red(a,36,37)
    rnd(a,36)
    a(f"""v_ashrrev_i32 v37, 31, v36
    v_or_b32 v37, 0x80000000, v37
    v_xor_b32 v36, v36, v37
    v_and_b32 v36, 0xffff0000, v36
    s_sub_u32 s7, 2047, s3
    v_or_b32 v36, s7, v36
    s_and_b32 s7, s3, 3
    s_lshl_b32 s14, s7, 2
    v_mov_b32 v4, s14
    ds_write_b32 v4, v36
    s_waitcnt lgkmcnt(0)
    s_barrier
    s_cmp_lg_u32 s7, 0
    s_cbranch_scc1 K5_END
    ds_read_b128 v[4:7], v4
    s_waitcnt lgkmcnt(0)
    v_max3_u32 v4, v4, v5, v6
    v_max_u32 v4, v4, v7
    v_or_b32 v4, 0x8000, v4
    s_mov_b64 exec, s[50:51]
    s_lshl_b32 s7, s2, 2
    buffer_store_dword v4, v1, s[44:47], s7 offen
    K5_END:
    s_endpgm""")
    return desc("k5_kernel",128,72,128)

def silu_like(a, v, t, sig=False):
    a(f"v_mul_f32 v{t}, {hex(f2u(-LOG2E))}, v{v}\nv_exp_f32 v{t}, v{t}\ns_nop 0\nv_add_f32 v{t}, 1.0, v{t}\nv_rcp_f32 v{t}, v{t}\ns_nop 0")
    if sig: a(f"v_mov_b32 v{v}, v{t}")
    else: a(f"v_mul_f32 v{v}, v{v}, v{t}")
    rnd(a,v)
def k6(a):
    head(a,"k6_kernel")
    a("s_cmp_ge_u32 s2, 56\ns_cbranch_scc1 K6_END")
    a("s_load_dwordx4 s[4:7], s[0:1], 56\ns_load_dwordx2 s[8:9], s[0:1], 72\ns_load_dwordx4 s[48:51], s[0:1], 96\ns_load_dwordx2 s[12:13], s[0:1], 112\ns_waitcnt lgkmcnt(0)")
    srd(a,16,4,448*3584); srd(a,20,6,448*3584); srd(a,24,8,1792*896); srd(a,28,12,8192,WS_R)
    srd(a,32,12,2048*896,WS_H2); srd(a,36,12,56*1792,WS_YP); srd(a,40,50,256); srd(a,44,48,2048*896)
    srd(a,52,12,2048*896,WS_X1); srd(a,56,12,2688*4,WS_MOD)
    G,U,W,T=24,52,80,112
    a(f"""v_and_b32 v2, 15, v0
    v_lshrrev_b32 v3, 4, v0
    v_mul_u32_u24 v12, {28*3584}, v3
    v_lshl_add_u32 v12, v2, 2, v12
    s_lshl_b32 s3, s2, 6
    v_lshlrev_b32 v5, 2, v0
    v_lshlrev_b32 v14, 3, v0
    s_mul_i32 s15, s2, {32*896}
    buffer_load_dwordx2 v[6:7], v14, s[28:31], 0 offen""")
    for i in range(28):
        a(f"s_add_u32 s14, s3, {i*3584}\nbuffer_load_dword v{G+i}, v12, s[16:19], s14 offen\nbuffer_load_dword v{U+i}, v12, s[20:23], s14 offen")
    a(f"s_mov_b32 s14, {5*1792}\nbuffer_load_dwordx2 v[16:17], v14, s[56:59], s14 offen\ns_waitcnt vmcnt(57)")
    a("v_max_u32 v4, v6, v7")
    wave_red(a,4,6,"v_max_u32")
    a(f"""v_lshrrev_b32 v6, 6, v0
    v_lshlrev_b32 v6, 2, v6
    ds_write_b32 v6, v4
    s_waitcnt lgkmcnt(0)
    s_barrier
    v_mov_b32 v6, 0
    ds_read_b128 v[{T}:{T+3}], v6
    s_waitcnt lgkmcnt(0)
    v_max3_u32 v4, v{T}, v{T+1}, v{T+2}
    v_max_u32 v4, v4, v{T+3}
    s_nop 0
    v_readfirstlane_b32 s60, v4       ; key
    s_nop 3
    s_and_b32 s61, s60, 0x7ff
    s_sub_u32 s61, 2047, s61          ; idx
    s_mul_i32 s62, s61, 896
    buffer_load_dword v6, v5, s[32:35], s62 offen sc1    ; h2 pair
    buffer_load_dword v13, v5, s[52:55], s62 offen sc1   ; x1 pair
    s_waitcnt vmcnt(30)""")
    for f in range(32): a(f"s_add_u32 s14, s15, {f*896}\nbuffer_load_dword v{W+f}, v5, s[24:27], s14 offen")
    a(f"""s_waitcnt vmcnt(33)
    v_lshlrev_b32 v8, 16, v6
    v_and_b32 v9, 0xffff0000, v6
    ds_write_b64 v14, v[8:9] offset:64
    s_waitcnt lgkmcnt(0)
    s_barrier
    v_mul_u32_u24 v7, 112, v3
    v_mov_b32 v20, 0
    v_mov_b32 v21, 0
    v_mov_b32 v22, 0
    v_mov_b32 v23, 0""")
    for c0,n in ((0,16),(16,12)):
        for i in range(n//4): a(f"ds_read_b128 v[{T+4*i}:{T+3+4*i}], v7 offset:{64+4*c0+16*i}")
        a("s_waitcnt lgkmcnt(0)")
        for i in range(n):
            a(f"v_lshlrev_b32 v10, 16, v{G+c0+i}\nv_and_b32 v11, 0xffff0000, v{G+c0+i}\nv_fmac_f32 v20, v10, v{T+i}\nv_fmac_f32 v21, v11, v{T+i}")
            a(f"v_lshlrev_b32 v10, 16, v{U+c0+i}\nv_and_b32 v11, 0xffff0000, v{U+c0+i}\nv_fmac_f32 v22, v10, v{T+i}\nv_fmac_f32 v23, v11, v{T+i}")
    a(f"""v_lshlrev_b32 v7, 4, v0
    ds_write_b128 v7, v[20:23] offset:4096
    s_waitcnt lgkmcnt(0)
    s_barrier
    v_lshlrev_b32 v7, 4, v2""")
    R=[20]+[G+4*g for g in range(14)]+[T]
    for g in range(16): a(f"ds_read_b128 v[{R[g]}:{R[g]+3}], v7 offset:{4096+256*g}")
    a("s_waitcnt lgkmcnt(0)")
    for g in range(1,16):
        for c in range(4): a(f"v_add_f32 v{20+c}, v{20+c}, v{R[g]+c}")
    for c in range(4): rnd(a,20+c)
    silu_like(a,20,10); silu_like(a,21,10)
    a("v_mul_f32 v20, v20, v22\nv_mul_f32 v21, v21, v23"); rnd(a,20); rnd(a,21)
    a(f"""v_lshlrev_b32 v7, 3, v2
    ds_write_b64 v7, v[20:21] offset:8192
    s_waitcnt lgkmcnt(0)
    s_barrier
    v_mov_b32 v7, 0""")
    for i in range(8): a(f"ds_read_b128 v[{G+4*i}:{G+3+4*i}], v7 offset:{8192+16*i}")
    a("v_mov_b32 v20, 0\nv_mov_b32 v21, 0\ns_waitcnt vmcnt(0) lgkmcnt(0)")
    for f in range(32):
        a(f"v_lshlrev_b32 v10, 16, v{W+f}\nv_and_b32 v11, 0xffff0000, v{W+f}\nv_fmac_f32 v20, v10, v{G+f}\nv_fmac_f32 v21, v11, v{G+f}")
    a(f"""s_mul_i32 s14, s2, 1792
    v_cmp_gt_u32 vcc, 224, v0
    s_and_saveexec_b64 s[64:65], vcc
    s_cbranch_execz K6_S1
    buffer_store_dwordx2 v[20:21], v14, s[36:39], s14 offen sc1
    K6_S1:
    s_mov_b64 exec, s[64:65]
    s_waitcnt vmcnt(0)
    s_barrier
    v_cmp_eq_u32 vcc, 0, v0
    s_and_saveexec_b64 s[64:65], vcc
    s_cbranch_execz K6_S2
    v_mov_b32 v10, 1
    buffer_atomic_add v10, v0, s[40:43], 0 offen offset:32 sc0
    s_waitcnt vmcnt(0)
    ds_write_b32 v0, v10
    K6_S2:
    s_mov_b64 exec, s[64:65]
    s_waitcnt lgkmcnt(0)
    s_barrier
    ds_read_b32 v10, v7
    s_waitcnt lgkmcnt(0)
    v_readfirstlane_b32 s14, v10
    s_nop 3
    s_cmp_lg_u32 s14, 55
    s_cbranch_scc1 K6_END
    v_cmp_gt_u32 vcc, 224, v0
    s_and_saveexec_b64 s[64:65], vcc
    s_cbranch_execz K6_END""")
    Y=lambda b: 2*b+ (16 if b>=4 else -4+0) if False else (24+2*b if b<52 else 2*(b-52)+ (0 if False else 0))
    regs=[24+2*b for b in range(52)]+[2,6,20,22]
    for b in range(56): a(f"s_mov_b32 s14, {b*1792}\nbuffer_load_dwordx2 v[{regs[b]}:{regs[b]+1}], v14, s[36:39], s14 offen sc1")
    a(f"""s_and_b32 s14, s60, 0xffff0000
    v_mov_b32 v18, s14
    v_ashrrev_i32 v19, 31, v18
    v_not_b32 v19, v19
    v_or_b32 v19, 0x80000000, v19
    v_xor_b32 v18, v18, v19
    v_and_b32 v18, 0xffff0000, v18""")
    silu_like(a,18,10,sig=True)
    a("s_waitcnt vmcnt(0)")
    for b in range(1,56): a(f"v_add_f32 v24, v24, v{regs[b]}\nv_add_f32 v25, v25, v{regs[b]+1}")
    a("v_lshlrev_b32 v10, 16, v13\nv_and_b32 v11, 0xffff0000, v13")
    for c in range(2):
        rnd(a,24+c); a(f"v_mul_f32 v{24+c}, v{24+c}, v18"); rnd(a,24+c)
        a(f"v_add_f32 v{24+c}, v{24+c}, v{8+c}"); rnd(a,24+c)
        a(f"v_mul_f32 v{24+c}, v{24+c}, v{16+c}"); rnd(a,24+c)
        a(f"v_add_f32 v{24+c}, v{24+c}, v{10+c}")
    a("v_cvt_pk_bf16_f32 v24, v24, v25\nbuffer_store_dword v24, v5, s[44:47], s62 offen\nK6_END:\ns_endpgm")
    return desc("k6_kernel",128,72,128)
```

```python
from common import *
LOG2E=1.4426950408889634
K2SH=3
WPF=0
PFS=8192
def k1(a):
    head(a,"k1_kernel")
    a("s_cmp_ge_u32 s2, 564\ns_cbranch_scc1 K1_LN")
    a("s_load_dwordx4 s[4:7], s[0:1], 24\ns_load_dwordx4 s[8:11], s[0:1], 80\ns_load_dwordx4 s[36:39], s[0:1], 104\ns_waitcnt lgkmcnt(0)\ns_mov_b32 s12, s38\ns_mov_b32 s13, s39")
    a("s_mov_b32 s30, 0x05040100\ns_mov_b32 s31, 0x07060302")
    a("s_cmp_ge_u32 s2, 84\ns_cbranch_scc1 K1_W")
    srd(a,16,8,896); srd(a,20,10,448*5376); srd(a,24,12,2688*4,WS_MOD); srd(a,40,36,256)
    a(f"""v_lshlrev_b32 v1, 1, v0
    buffer_load_ushort v2, v1, s[16:19], 0 offen
    buffer_load_ushort v3, v1, s[16:19], 0 offen offset:512
    v_and_b32 v4, 15, v0
    v_lshrrev_b32 v5, 4, v0
    v_mul_u32_u24 v6, {28*5376}, v5
    v_lshl_add_u32 v6, v4, 2, v6
    s_lshl_b32 s3, s2, 6""")
    for i in range(28):
        a(f"s_add_u32 s14, s3, {i*5376}\nbuffer_load_dword v{16+i}, v6, s[20:23], s14 offen")
    a("s_waitcnt vmcnt(28)")
    for r in (2,3):
        a(f"""v_lshlrev_b32 v{r}, 16, v{r}
        v_mul_f32 v7, {hex(f2u(-LOG2E))}, v{r}
        v_exp_f32 v7, v7
        s_nop 0
        v_add_f32 v7, 1.0, v7
        v_rcp_f32 v7, v7
        s_nop 0
        v_mul_f32 v{r}, v{r}, v7""")
        rnd(a,r)
    a(f"""v_lshlrev_b32 v7, 2, v0
    ds_write_b32 v7, v2
    ds_write_b32 v7, v3 offset:1024
    s_waitcnt lgkmcnt(0)
    s_barrier
    v_mul_u32_u24 v7, 112, v5""")
    for i in range(7): a(f"ds_read_b128 v[{44+4*i}:{47+4*i}], v7 offset:{16*i}")
    a("v_mov_b32 v8, 0\nv_mov_b32 v9, 0\ns_waitcnt vmcnt(0) lgkmcnt(0)")
    for i in range(28):
        a(f"v_lshlrev_b32 v10, 16, v{16+i}\nv_and_b32 v11, 0xffff0000, v{16+i}\nv_fmac_f32 v8, v10, v{44+i}\nv_fmac_f32 v9, v11, v{44+i}")
    a(f"""v_lshlrev_b32 v7, 3, v0
    ds_write_b64 v7, v[8:9] offset:4096
    s_waitcnt lgkmcnt(0)
    s_barrier
    v_cmp_gt_u32 vcc, 32, v0
    s_and_saveexec_b64 s[14:15], vcc
    s_cbranch_execz K1_END
    v_lshlrev_b32 v7, 2, v0""")
    for g in range(16): a(f"ds_read_b32 v{16+g}, v7 offset:{4096+128*g}")
    a("s_waitcnt lgkmcnt(0)")
    for g in range(1,16): a(f"v_add_f32 v16, v16, v{16+g}")
    rnd(a,16)
    a("s_sub_u32 s3, s2, 14\ns_cmp_lt_u32 s3, 14\ns_cbranch_scc0 K1_NOCA\nv_add_f32 v16, 1.0, v16"); rnd(a,16)
    a("""K1_NOCA:
    s_lshl_b32 s3, s2, 7
    buffer_store_dword v16, v7, s[24:27], s3 offen
    s_endpgm""")
    a("K1_W:\ns_cmp_ge_u32 s2, 308\ns_cbranch_scc1 K1_WO")
    if PFS: a(f"""s_cmp_ge_u32 s2, 188
    s_cbranch_scc1 K1_NOPF
    s_getpc_b64 s[44:45]
    K1_PC:
    s_add_u32 s44, s44, k3_kernel-K1_PC
    s_addc_u32 s45, s45, 0
    s_sub_u32 s3, s2, 84
    s_lshr_b32 s3, s3, 3
    s_lshl_b32 s3, s3, 12
    s_min_u32 s3, s3, K6_END-k3_kernel-4096
    v_lshl_add_u32 v48, v0, 4, s3
    v_mov_b32 v49, s45
    v_add_co_u32 v48, vcc, s44, v48
    s_nop 1
    v_addc_co_u32 v49, vcc, 0, v49, vcc""")
    if PFS: a("global_load_dwordx4 v[52:55], v[48:49], off")
    if PFS: a("K1_NOPF:")
    srd(a,16,4,448*8192); srd(a,20,12,448*8192,WS_WQF)
    a(f"""v_lshrrev_b32 v1, 6, v0
    s_sub_u32 s3, s2, 84
    s_nop 0
    v_readfirstlane_b32 s14, v1
    s_lshl_b32 s3, s3, 2
    s_add_u32 s3, s3, s14
    s_and_b32 s14, s3, 1           ; hh
    s_lshr_b32 s15, s3, 1
    s_mul_hi_u32 s28, s15, {(2**32+27)//28}   ; head
    s_mul_i32 s29, s28, 28
    s_sub_u32 s29, s15, s29        ; ks
    s_lshl_b32 s32, s29, 1
    s_add_u32 s32, s32, s14
    s_lshl_b32 s32, s32, 16        ; (16ks+8hh)*8192
    s_lshl_b32 s33, s28, 9
    s_add_u32 s32, s32, s33        ; + head*512
    v_and_b32 v2, 63, v0
    v_lshlrev_b32 v3, 3, v2""")
    for e in range(8): a(f"s_add_u32 s33, s32, {e*8192}\nbuffer_load_dwordx2 v[{16+2*e}:{17+2*e}], v3, s[16:19], s33 offen nt")
    a(f"""v_lshrrev_b32 v4, 3, v2
    v_lshlrev_b32 v4, 11, v4
    v_and_b32 v5, 4, v2
    v_lshl_add_u32 v4, v5, 6, v4
    v_and_b32 v5, 1, v2
    v_lshl_add_u32 v4, v5, 7, v4
    v_and_b32 v5, 2, v2
    v_lshl_add_u32 v4, v5, 5, v4
    s_and_b32 s34, s3, 3
    s_lshl_b32 s34, s34, 9
    v_add_u32 v4, s34, v4
    s_mul_i32 s33, s28, {8*28*1024}
    s_and_b32 s34, s29, 30
    s_lshl_b32 s34, s34, 10
    s_add_u32 s33, s33, s34
    v_lshrrev_b32 v6, 7, v0
    v_mul_u32_u24 v6, {28*1024}, v6
    v_and_b32 v5, 127, v0
    v_lshl_add_u32 v6, v5, 4, v6
    s_mov_b32 s35, {2*28*1024}
    s_branch K1_TR""")
    a("K1_WO:")
    srd(a,16,6,4096*896); srd(a,20,12,4096*896,WS_WOF)
    a(f"""s_sub_u32 s3, s2, 308
    v_cmp_le_u32 vcc, 112, v0
    v_mov_b32 v5, 0
    s_nop 0
    v_cndmask_b32 v1, v5, 1, vcc   ; h'
    v_mul_u32_u24 v2, 112, v1
    v_sub_u32 v2, v0, v2           ; g
    v_mul_u32_u24 v3, {4*896}, v1
    v_lshl_add_u32 v3, v2, 3, v3
    s_mul_i32 s32, s3, {16*896}""")
    for e in range(8): a(f"s_add_u32 s33, s32, {(8*(e>>2)+(e&3))*896}\nbuffer_load_dwordx2 v[{16+2*e}:{17+2*e}], v3, s[16:19], s33 offen nt")
    a(f"""v_lshrrev_b32 v4, 3, v2
    v_lshlrev_b32 v4, 10, v4
    v_lshl_add_u32 v4, v1, 9, v4
    v_and_b32 v5, 7, v2
    v_lshl_add_u32 v4, v5, 6, v4
    s_mul_i32 s33, s3, {14*1024}
    v_lshlrev_b32 v6, 4, v0
    s_mov_b32 s35, 4096
    v_cmp_gt_u32 vcc, 224, v0
    v_mov_b32 v5, 16384
    s_nop 0
    v_cndmask_b32 v4, v5, v4, vcc
    s_add_u32 s22, s33, {14*1024}""")
    a("K1_TR:\ns_waitcnt vmcnt(0)")
    for b in range(4):
        for p in range(4):
            a(f"v_perm_b32 v{32+4*b+p}, v{16+4*p+2+(b>>1)}, v{16+4*p+(b>>1)}, s{30+(b&1)}")
    for b in range(4): a(f"ds_write_b128 v4, v[{32+4*b}:{35+4*b}] offset:{16*b}")
    a("v_lshlrev_b32 v7, 4, v0\ns_waitcnt lgkmcnt(0)\ns_barrier")
    for j in range(4): a(f"ds_read_b128 v[{32+4*j}:{35+4*j}], v7 offset:{4096*j}")
    for j in range(4):
        a(f"s_waitcnt lgkmcnt({3-j})\nbuffer_store_dwordx4 v[{32+4*j}:{35+4*j}], v6, s[20:23], s33 offen\ns_add_u32 s33, s33, s35")
    a("K1_END:\ns_endpgm\nK1_LN:\ns_sub_u32 s2, s2, 564")
    k2(a)
    return desc("k1_kernel",80,48,80)

def rowsetup(a, nwg, end, sh=2):
    a(f"""s_cmp_ge_u32 s2, {nwg}
    s_cbranch_scc1 {end}
    v_lshrrev_b32 v1, 6, v0
    s_nop 0
    v_readfirstlane_b32 s3, v1
    s_lshl_b32 s4, s2, {sh}
    s_add_u32 s3, s3, s4
    v_and_b32 v1, 63, v0
    v_cmp_gt_u32 vcc, 56, v1
    v_mov_b32 v2, 0
    s_nop 0
    v_cndmask_b32 v2, v2, 1.0, vcc""")
def k2(a):
    rowsetup(a,512,"K2_END")
    a("s_load_dwordx2 s[4:5], s[0:1], 0\ns_load_dwordx4 s[36:39], s[0:1], 104\ns_load_dwordx4 s[8:11], s[0:1], 56\ns_load_dwordx2 s[12:13], s[0:1], 72\ns_waitcnt lgkmcnt(0)")
    srd(a,16,4,2048*896); srd(a,20,38,2688*4,WS_MOD); srd(a,24,38,2048*896,WS_HF); srd(a,40,38,2048,WS_R)
    a(f"""v_lshlrev_b32 v3, 4, v1
    s_mul_i32 s6, s3, 896
    buffer_load_dwordx4 v[4:7], v3, s[16:19], s6 offen
    v_lshlrev_b32 v8, 5, v1
    s_waitcnt vmcnt(0)""")
    unpack8(a,16,4)
    layernorm(a,16,24,32,2)
    pack8(a,4,24)
    a(f"""s_lshr_b32 s6, s3, 5
    s_mul_i32 s6, s6, {28*1024}
    s_and_b32 s7, s3, 31
    s_lshl_b32 s7, s7, 4
    s_add_u32 s6, s6, s7
    v_lshlrev_b32 v3, 9, v1""")
    if WPF:
        a("v_lshlrev_b32 v40, 4, v0\ns_mul_i32 s7, s2, 3136")
        for j in range(3):
            srd(a,28,8+2*j,448*3584); a(f"buffer_load_dwordx4 v[{44+4*j}:{47+4*j}], v40, s[28:31], s7 offen")
    a(f"""v_cmp_gt_u32 vcc, 56, v1
    s_and_saveexec_b64 s[14:15], vcc
    buffer_store_dwordx4 v[4:7], v3, s[24:27], s6 offen
    K2_END:
    s_endpgm""")

def k5(a):
    head(a,"k5_kernel")
    rowsetup(a,512,"K5_END")
    a("s_load_dwordx2 s[4:5], s[0:1], 0\ns_load_dwordx2 s[8:9], s[0:1], 48\ns_load_dwordx2 s[10:11], s[0:1], 96\ns_load_dwordx2 s[12:13], s[0:1], 112\ns_load_dwordx2 s[56:57], s[0:1], 104\ns_waitcnt lgkmcnt(0)")
    srd(a,16,4,2048*896); srd(a,20,12,2688*4,WS_MOD); srd(a,24,12,4*PART_SZ,WS_PART); srd(a,28,8,896)
    srd(a,32,10,2048*896); srd(a,36,12,2048*896,WS_X1); srd(a,40,12,2048*896,WS_H2); srd(a,44,12,8192,WS_R); srd(a,60,56,256)
    a("v_lshlrev_b32 v3, 4, v1\nv_lshlrev_b32 v8, 5, v1\ns_lshr_b32 s6, s3, 1\ns_mul_i32 s15, s6, 1792\ns_mul_i32 s6, s3, 896\ns_and_b32 s7, s3, 1\ns_mul_i32 s7, s7, 0x02020000\ns_add_u32 s52, s7, 0x01000c0c")
    PB=lambda p: 16+8*p if p<4 else 32+8*p
    for p in range(8):
        b=PB(p)
        a(f"s_add_u32 s14, s15, {p*PART_SZ//2}\nbuffer_load_dwordx4 v[{b}:{b+3}], v8, s[24:27], s14 offen\nbuffer_load_dwordx4 v[{b+4}:{b+7}], v8, s[24:27], s14 offen offset:16")
    a("buffer_load_dwordx4 v[4:7], v3, s[16:19], s6 offen\nbuffer_load_dwordx4 v[12:15], v3, s[28:31], 0 offen")
    for m in range(2,6):
        a(f"s_mov_b32 s14, {m*1792}\nbuffer_load_dwordx4 v[{96+8*(m-2)}:{99+8*(m-2)}], v8, s[20:23], s14 offen\nbuffer_load_dwordx4 v[{100+8*(m-2)}:{103+8*(m-2)}], v8, s[20:23], s14 offen offset:16")
    P=48
    for p in range(8):
        a(f"s_waitcnt vmcnt({24-2*p})")
        for i in range(8):
            x=PB(p)+i
            if p==0: a(f"v_perm_b32 v{P+i}, v{x}, v{x}, s52")
            else: a(f"v_perm_b32 v{x}, v{x}, v{x}, s52\nv_add_f32 v{P+i}, v{P+i}, v{x}")
    a("s_waitcnt vmcnt(0)")
    unpack8(a,40,12)
    for i in range(8): a(f"v_add_f32 v{112+i}, 1.0, v{112+i}"); rnd(a,112+i)
    a("v_cmp_gt_u32 s[48:49], 56, v1\nv_cmp_eq_u32 s[50:51], 0, v1")
    unpack8(a,16,4)
    for i in range(8):
        rnd(a,P+i)
        a(f"v_mul_f32 v{P+i}, v{P+i}, v{96+i}"); rnd(a,P+i)
        a(f"v_add_f32 v{16+i}, v{16+i}, v{P+i}"); rnd(a,16+i)
    layernorm(a,16,24,32,2)
    a("v_mov_b32 v36, 0")
    for i in range(8):
        a(f"v_mul_f32 v{24+i}, v{24+i}, v{112+i}"); rnd(a,24+i)
        a(f"v_add_f32 v{24+i}, v{24+i}, v{104+i}"); rnd(a,24+i)
        a(f"v_fmac_f32 v36, v{24+i}, v{40+i}")
        a(f"v_mul_f32 v{P+i}, v{24+i}, v{120+i}"); rnd(a,P+i)
        a(f"v_add_f32 v{P+i}, v{P+i}, v{16+i}")
    a("v_mul_f32 v36, v36, v2")
    o=64
    pack8(a,o,P); pack8(a,o+4,16); pack8(a,o+8,24)
    a(f"""s_mov_b64 exec, s[48:49]
    buffer_store_dwordx4 v[{o}:{o+3}], v3, s[32:35], s6 offen
    buffer_store_dwordx4 v[{o+4}:{o+7}], v3, s[36:39], s6 offen
    buffer_store_dwordx4 v[{o+8}:{o+11}], v3, s[40:43], s6 offen
    s_mov_b64 exec, -1""")
    wave_red(a,36,37)
    rnd(a,36)
    a(f"""v_ashrrev_i32 v37, 31, v36
    v_or_b32 v37, 0x80000000, v37
    v_xor_b32 v36, v36, v37
    v_and_b32 v36, 0xffff0000, v36
    s_sub_u32 s7, 2047, s3
    v_or_b32 v36, s7, v36
    s_and_b32 s7, s3, 3
    s_lshl_b32 s14, s7, 2
    v_mov_b32 v4, s14
    ds_write_b32 v4, v36
    s_waitcnt lgkmcnt(0)
    s_barrier
    s_cmp_lg_u32 s7, 0
    s_cbranch_scc1 K5_END
    ds_read_b128 v[4:7], v4
    s_waitcnt lgkmcnt(0)
    v_max3_u32 v4, v4, v5, v6
    v_max_u32 v4, v4, v7
    v_or_b32 v4, 0x8000, v4
    s_mov_b64 exec, s[50:51]
    s_lshl_b32 s7, s2, 2
    buffer_store_dword v4, v1, s[44:47], s7 offen
    K5_END:
    s_endpgm""")
    return desc("k5_kernel",128,72,128)

def silu_like(a, v, t, sig=False):
    a(f"v_mul_f32 v{t}, {hex(f2u(-LOG2E))}, v{v}\nv_exp_f32 v{t}, v{t}\ns_nop 0\nv_add_f32 v{t}, 1.0, v{t}\nv_rcp_f32 v{t}, v{t}\ns_nop 0")
    if sig: a(f"v_mov_b32 v{v}, v{t}")
    else: a(f"v_mul_f32 v{v}, v{v}, v{t}")
    rnd(a,v)
def k6(a):
    head(a,"k6_kernel")
    a("s_cmp_ge_u32 s2, 56\ns_cbranch_scc1 K6_END")
    a("s_load_dwordx4 s[4:7], s[0:1], 56\ns_load_dwordx2 s[8:9], s[0:1], 72\ns_load_dwordx4 s[48:51], s[0:1], 96\ns_load_dwordx2 s[12:13], s[0:1], 112\ns_waitcnt lgkmcnt(0)")
    srd(a,16,4,448*3584); srd(a,20,6,448*3584); srd(a,24,8,1792*896); srd(a,28,12,8192,WS_R)
    srd(a,32,12,2048*896,WS_H2); srd(a,36,12,56*1792,WS_YP); srd(a,40,50,256); srd(a,44,48,2048*896)
    srd(a,52,12,2048*896,WS_X1); srd(a,56,12,2688*4,WS_MOD)
    G,U,W,T=24,52,80,112
    a(f"""v_and_b32 v2, 15, v0
    v_lshrrev_b32 v3, 4, v0
    v_mul_u32_u24 v12, {28*3584}, v3
    v_lshl_add_u32 v12, v2, 2, v12
    s_lshl_b32 s3, s2, 6
    v_lshlrev_b32 v5, 2, v0
    v_lshlrev_b32 v14, 3, v0
    s_mul_i32 s15, s2, {32*896}
    buffer_load_dwordx2 v[6:7], v14, s[28:31], 0 offen""")
    for i in range(28):
        a(f"s_add_u32 s14, s3, {i*3584}\nbuffer_load_dword v{G+i}, v12, s[16:19], s14 offen\nbuffer_load_dword v{U+i}, v12, s[20:23], s14 offen")
    a(f"s_mov_b32 s14, {5*1792}\nbuffer_load_dwordx2 v[16:17], v14, s[56:59], s14 offen\ns_waitcnt vmcnt(57)")
    a("v_max_u32 v4, v6, v7")
    wave_red(a,4,6,"v_max_u32")
    a(f"""v_lshrrev_b32 v6, 6, v0
    v_lshlrev_b32 v6, 2, v6
    ds_write_b32 v6, v4
    s_waitcnt lgkmcnt(0)
    s_barrier
    v_mov_b32 v6, 0
    ds_read_b128 v[{T}:{T+3}], v6
    s_waitcnt lgkmcnt(0)
    v_max3_u32 v4, v{T}, v{T+1}, v{T+2}
    v_max_u32 v4, v4, v{T+3}
    s_nop 0
    v_readfirstlane_b32 s60, v4       ; key
    s_nop 3
    s_and_b32 s61, s60, 0x7ff
    s_sub_u32 s61, 2047, s61          ; idx
    s_mul_i32 s62, s61, 896
    buffer_load_dword v6, v5, s[32:35], s62 offen sc1    ; h2 pair
    buffer_load_dword v13, v5, s[52:55], s62 offen sc1   ; x1 pair
    s_waitcnt vmcnt(30)""")
    for f in range(32): a(f"s_add_u32 s14, s15, {f*896}\nbuffer_load_dword v{W+f}, v5, s[24:27], s14 offen")
    a(f"""s_waitcnt vmcnt(33)
    v_lshlrev_b32 v8, 16, v6
    v_and_b32 v9, 0xffff0000, v6
    ds_write_b64 v14, v[8:9] offset:64
    s_waitcnt lgkmcnt(0)
    s_barrier
    v_mul_u32_u24 v7, 112, v3
    v_mov_b32 v20, 0
    v_mov_b32 v21, 0
    v_mov_b32 v22, 0
    v_mov_b32 v23, 0""")
    for c0,n in ((0,16),(16,12)):
        for i in range(n//4): a(f"ds_read_b128 v[{T+4*i}:{T+3+4*i}], v7 offset:{64+4*c0+16*i}")
        a("s_waitcnt lgkmcnt(0)")
        for i in range(n):
            a(f"v_lshlrev_b32 v10, 16, v{G+c0+i}\nv_and_b32 v11, 0xffff0000, v{G+c0+i}\nv_fmac_f32 v20, v10, v{T+i}\nv_fmac_f32 v21, v11, v{T+i}")
            a(f"v_lshlrev_b32 v10, 16, v{U+c0+i}\nv_and_b32 v11, 0xffff0000, v{U+c0+i}\nv_fmac_f32 v22, v10, v{T+i}\nv_fmac_f32 v23, v11, v{T+i}")
    a(f"""v_lshlrev_b32 v7, 4, v0
    ds_write_b128 v7, v[20:23] offset:4096
    s_waitcnt lgkmcnt(0)
    s_barrier
    v_lshlrev_b32 v7, 4, v2""")
    R=[20]+[G+4*g for g in range(14)]+[T]
    for g in range(16): a(f"ds_read_b128 v[{R[g]}:{R[g]+3}], v7 offset:{4096+256*g}")
    a("s_waitcnt lgkmcnt(0)")
    for g in range(1,16):
        for c in range(4): a(f"v_add_f32 v{20+c}, v{20+c}, v{R[g]+c}")
    for c in range(4): rnd(a,20+c)
    silu_like(a,20,10); silu_like(a,21,10)
    a("v_mul_f32 v20, v20, v22\nv_mul_f32 v21, v21, v23"); rnd(a,20); rnd(a,21)
    a(f"""v_lshlrev_b32 v7, 3, v2
    ds_write_b64 v7, v[20:21] offset:8192
    s_waitcnt lgkmcnt(0)
    s_barrier
    v_mov_b32 v7, 0""")
    for i in range(8): a(f"ds_read_b128 v[{G+4*i}:{G+3+4*i}], v7 offset:{8192+16*i}")
    a("v_mov_b32 v20, 0\nv_mov_b32 v21, 0\ns_waitcnt vmcnt(0) lgkmcnt(0)")
    for f in range(32):
        a(f"v_lshlrev_b32 v10, 16, v{W+f}\nv_and_b32 v11, 0xffff0000, v{W+f}\nv_fmac_f32 v20, v10, v{G+f}\nv_fmac_f32 v21, v11, v{G+f}")
    a(f"""s_mul_i32 s14, s2, 1792
    v_cmp_gt_u32 vcc, 224, v0
    s_and_saveexec_b64 s[64:65], vcc
    s_cbranch_execz K6_S1
    buffer_store_dwordx2 v[20:21], v14, s[36:39], s14 offen sc1
    K6_S1:
    s_mov_b64 exec, s[64:65]
    s_waitcnt vmcnt(0)
    s_barrier
    v_cmp_eq_u32 vcc, 0, v0
    s_and_saveexec_b64 s[64:65], vcc
    s_cbranch_execz K6_S2
    v_mov_b32 v10, 1
    buffer_atomic_add v10, v0, s[40:43], 0 offen offset:32 sc0
    s_waitcnt vmcnt(0)
    ds_write_b32 v0, v10
    K6_S2:
    s_mov_b64 exec, s[64:65]
    s_waitcnt lgkmcnt(0)
    s_barrier
    ds_read_b32 v10, v7
    s_waitcnt lgkmcnt(0)
    v_readfirstlane_b32 s14, v10
    s_nop 3
    s_cmp_lg_u32 s14, 55
    s_cbranch_scc1 K6_END
    v_cmp_gt_u32 vcc, 224, v0
    s_and_saveexec_b64 s[64:65], vcc
    s_cbranch_execz K6_END""")
    Y=lambda b: 2*b+ (16 if b>=4 else -4+0) if False else (24+2*b if b<52 else 2*(b-52)+ (0 if False else 0))
    regs=[24+2*b for b in range(52)]+[2,6,20,22]
    for b in range(56): a(f"s_mov_b32 s14, {b*1792}\nbuffer_load_dwordx2 v[{regs[b]}:{regs[b]+1}], v14, s[36:39], s14 offen sc1")
    a(f"""s_and_b32 s14, s60, 0xffff0000
    v_mov_b32 v18, s14
    v_ashrrev_i32 v19, 31, v18
    v_not_b32 v19, v19
    v_or_b32 v19, 0x80000000, v19
    v_xor_b32 v18, v18, v19
    v_and_b32 v18, 0xffff0000, v18""")
    silu_like(a,18,10,sig=True)
    a("s_waitcnt vmcnt(0)")
    for b in range(1,56): a(f"v_add_f32 v24, v24, v{regs[b]}\nv_add_f32 v25, v25, v{regs[b]+1}")
    a("v_lshlrev_b32 v10, 16, v13\nv_and_b32 v11, 0xffff0000, v13")
    for c in range(2):
        rnd(a,24+c); a(f"v_mul_f32 v{24+c}, v{24+c}, v18"); rnd(a,24+c)
        a(f"v_add_f32 v{24+c}, v{24+c}, v{8+c}"); rnd(a,24+c)
        a(f"v_mul_f32 v{24+c}, v{24+c}, v{16+c}"); rnd(a,24+c)
        a(f"v_add_f32 v{24+c}, v{24+c}, v{10+c}")
    a("v_cvt_pk_bf16_f32 v24, v24, v25\nbuffer_store_dword v24, v5, s[44:47], s62 offen\nK6_END:\ns_endpgm")
    return desc("k6_kernel",128,72,128)
```
